```python
import torch

def _softmax(x, axis=-1):
    return torch.softmax(x, dim=axis)

def _gelu(x):
    return torch.nn.functional.gelu(x, approximate='tanh')

def _silu(x):
    return torch.nn.functional.silu(x)

def _sigmoid(x):
    return torch.sigmoid(x)

def _layernorm(x, axis=-1, eps=1e-05):
    m = x.mean(dim=axis, keepdim=True)
    v = x.var(dim=axis, keepdim=True, unbiased=False)
    return (x - m) / torch.sqrt(v + eps)

def _scatter_add(tgt, idx, src, axis=0):
    return tgt.clone().index_add_(axis, idx, src)

def _segment_sum(src, seg, n):
    out = torch.zeros((n,) + src.shape[1:], dtype=src.dtype)
    return out.index_add_(0, seg, src)

def _pad(x, pw):
    flat = tuple((v for pair in reversed(pw) for v in pair))
    return torch.nn.functional.pad(x, flat)
kernel_name = 'standalone__video_timesformer__vision'

def setup_inputs():

    _w = lambda a: (lambda t: t.to(torch.bfloat16) if t.is_floating_point() else t)(torch.as_tensor(a))
    T = 8
    p = 16
    HW = 512 // p * p
    N = (HW // p) ** 2
    C = 192
    return {'x': _w((lambda *s: torch.randn(*s, dtype=torch.bfloat16) * 0.1)(1, T, N, C)), 'wqkv_t': _w((lambda *s: torch.randn(*s, dtype=torch.bfloat16) * 0.1)(C, 3 * C)), 'wo_t': _w((lambda *s: torch.randn(*s, dtype=torch.bfloat16) * 0.1)(C, C)), 'wqkv_s': _w((lambda *s: torch.randn(*s, dtype=torch.bfloat16) * 0.1)(C, 3 * C)), 'wo_s': _w((lambda *s: torch.randn(*s, dtype=torch.bfloat16) * 0.05)(C, C))}

def reference(x, wqkv_t, wo_t, wqkv_s, wo_s):
    B, T, N, C = x.shape
    scale = C ** (-0.5)
    xt = (lambda x, *d: x.permute(*d))(x, 0, 2, 1, 3).reshape(B * N, T, C)
    h = _layernorm(xt, axis=-1)
    qkv = h @ wqkv_t
    q, k, v = (qkv[..., :C].clone(), qkv[..., C:2 * C].clone(), qkv[..., 2 * C:].clone())
    a = _softmax(torch.einsum('btc,bsc->bts', q, k) * scale, axis=-1)
    xt = xt + torch.einsum('bts,bsc->btc', a, v) @ wo_t
    x1 = (lambda x, *d: x.permute(*d))(xt.reshape(B, N, T, C), 0, 2, 1, 3)
    xs = x1.reshape(B * T, N, C)
    h = _layernorm(xs, axis=-1)
    qkv = h @ wqkv_s
    q, k, v = (qkv[..., :C].clone(), qkv[..., C:2 * C].clone(), qkv[..., 2 * C:].clone())
    a = _softmax(torch.einsum('bnc,bmc->bnm', q, k) * scale, axis=-1)
    xs = xs + torch.einsum('bnm,bmc->bnc', a, v) @ wo_s
    return xs.reshape(B, T, N, C)
```

```python
import re

TRANS = ("v_exp_f32", "v_log_f32", "v_rcp_f32", "v_rsq_f32", "v_sqrt_f32", "v_sin_f32", "v_cos_f32",
         "v_rcp_iflag_f32")
DPP_MODS = ("quad_perm", "row_shr", "row_shl", "row_ror", "row_mirror", "row_half_mirror", "row_bcast",
            "wave_shl", "wave_shr", "wave_rol", "wave_ror", "row_newbcast", "row_share", "row_xmask")

_reg_re = re.compile(r"^(-|\|)?(?:abs\()?([vsa])(\d+)\)?\|?$")
_rng_re = re.compile(r"^(-|\|)?([vsa])\[(\d+):(\d+)\]\|?$")


def parse_regs(tok):
    t = tok.strip()
    t = t.replace("sext(", "").replace("neg(", "")
    if t.startswith("-|"):
        t = t[1:]
    m = _reg_re.match(t)
    if m:
        return [(m.group(2), int(m.group(3)))]
    m = _rng_re.match(t)
    if m:
        return [(m.group(2), i) for i in range(int(m.group(3)), int(m.group(4)) + 1)]
    if t == "vcc":
        return [("s", 106), ("s", 107)]
    if t == "vcc_lo":
        return [("s", 106)]
    if t == "vcc_hi":
        return [("s", 107)]
    if t == "exec":
        return [("s", 126), ("s", 127)]
    if t == "exec_lo":
        return [("s", 126)]
    if t == "exec_hi":
        return [("s", 127)]
    if t == "m0":
        return [("s", 124)]
    return []


class Ins:
    __slots__ = ("text", "op", "ops", "mods", "kind", "dst", "src", "passes", "a", "b", "c", "note",
                 "sdst", "ssrc", "wide", "lds", "dpp", "target")

    def __init__(self, text):
        self.text = text
        code, _, note = text.partition(";")
        self.note = note
        code = code.strip()
        parts = code.split(None, 1)
        self.op = parts[0]
        rest = parts[1] if len(parts) > 1 else ""
        ops, cur, depth = [], "", 0
        for ch in rest:
            if ch in "[(":
                depth += 1
            elif ch in "])":
                depth -= 1
            if ch == "," and depth == 0:
                ops.append(cur.strip())
                cur = ""
            else:
                cur += ch
        if cur.strip():
            ops.append(cur.strip())
        mods = ""
        if ops:
            last = ops[-1].split(None, 1)
            if len(last) > 1:
                ops[-1] = last[0]
                mods = last[1]
        self.ops, self.mods = ops, mods
        self.dst, self.src = [], []
        self.passes = 0
        self.a = self.b = self.c = None
        self.wide = False
        self.lds = False
        self.dpp = any(m in mods for m in DPP_MODS)
        self.target = None
        op = self.op
        R = parse_regs
        allr = lambda l: [r for t in l for r in R(t)]
        if op.startswith("v_mfma"):
            self.kind = "mfma"
            self.passes = 8 if ("32x32x16" in op or "32x32x8" in op) else 4
            assert ("32x32x16" in op or "32x32x8" in op or "16x16x32" in op or "16x16x16" in op), op
            self.dst = R(ops[0])
            self.a, self.b, self.c = R(ops[1]), R(ops[2]), R(ops[3])
            self.src = self.a + self.b + self.c
        elif op.startswith("v_"):
            self.kind = "valu"
            base = op.replace("_e32", "").replace("_e64", "").replace("_dpp", "").replace("_sdwa", "")
            if base in TRANS:
                self.kind = "trans"
            if base.startswith("v_dot"):
                self.kind = "dot"
            if base.startswith("v_cmpx"):
                raise ValueError("no cmpx please")
            if base.startswith("v_permlane") and "swap" in base:
                self.kind = "permlane"
                self.dst = allr(ops[:2])
                self.src = allr(ops[:2])
            elif base in ("v_readfirstlane_b32", "v_readlane_b32"):
                self.kind = "readlane"
                self.dst = R(ops[0])
                self.src = allr(ops[1:])
            elif base in ("v_add_co_u32", "v_sub_co_u32", "v_subrev_co_u32", "v_addc_co_u32", "v_subb_co_u32",
                          "v_div_scale_f32"):
                self.dst = allr(ops[:2])
                self.src = allr(ops[2:])
            else:
                self.dst = R(ops[0])
                self.src = allr(ops[1:])
                if base in ("v_fmac_f32", "v_mac_f32", "v_dot2c_f32_bf16", "v_dot2c_f32_f16", "v_pk_fmac_f16",
                            "v_fmac_f64", "v_writelane_b32", "v_movreld_b32") or self.dpp or "sdwa" in op:
                    self.src = self.src + self.dst
                if base == "v_cndmask_b32" and len(ops) == 3:
                    self.src = self.src + R("vcc")
        elif op.startswith("ds_"):
            self.kind = "ds"
            if op.startswith("ds_read") or op.startswith("ds_bpermute") or op.startswith("ds_permute") \
                    or op.startswith("ds_swizzle") or "_rtn" in op:
                self.dst = R(ops[0])
                self.src = allr(ops[1:])
            else:
                self.src = allr(ops)
        elif op.startswith("buffer_") or op.startswith("global_"):
            self.kind = "vmem"
            ml = mods.split()
            if "lds" in ml:
                self.lds = True
                self.src = allr(ops) + R("m0")
            elif "_load" in op or ("atomic" in op and ("sc0" in ml or "glc" in ml)):
                self.dst = R(ops[0])
                self.src = allr(ops[1:] if "_load" in op else ops)
            else:
                self.src = allr(ops)
                if "x3" in op or "x4" in op:
                    self.wide = True
        elif op.startswith("s_"):
            self.kind = "salu"
            if op.startswith("s_load") or op.startswith("s_buffer_load") or op.startswith("s_mem"):
                self.kind = "smem"
                self.dst = R(ops[0])
                self.src = allr(ops[1:])
            elif op in ("s_waitcnt", "s_barrier", "s_nop", "s_endpgm", "s_setprio", "s_sleep"):
                self.kind = op
            elif op == "s_branch" or op.startswith("s_cbranch"):
                self.kind = "branch"
                self.target = ops[0]
                if "vcc" in op:
                    self.src = R("vcc")
                if "exec" in op:
                    self.src = R("exec")
                if "noedge" in note:
                    self.kind = "salu"
                    self.target = None
            elif op.startswith("s_cmp") or op.startswith("s_bitcmp"):
                self.src = allr(ops)
            else:
                self.dst = R(ops[0])
                self.src = allr(ops[1:])
                if "saveexec" in op:
                    self.dst = self.dst + R("exec")
                    self.src = self.src + R("exec")
        else:
            raise ValueError("unknown op " + text)


class State:
    def __init__(self):
        self.vm = {}
        self.lg = {}
        self.hz = {}

    def copy(self):
        s = State()
        s.vm = dict(self.vm)
        s.lg = dict(self.lg)
        s.hz = dict(self.hz)
        return s

    def merge(self, o):
        ch = False
        for a, b in ((self.vm, o.vm), (self.lg, o.lg), (self.hz, o.hz)):
            for k, v in b.items():
                if k not in a or a[k] > v:
                    a[k] = v
                    ch = True
        return ch

    def age(self, n):
        dead = []
        for k in self.hz:
            self.hz[k] += n
            if self.hz[k] > 24:
                dead.append(k)
        for k in dead:
            del self.hz[k]


def _wait_fields(text):
    vm = re.search(r"vmcnt\((\d+)\)", text)
    lg = re.search(r"lgkmcnt\((\d+)\)", text)
    return (int(vm.group(1)) if vm else None, int(lg.group(1)) if lg else None)


def need_nops(st, I):
    need = 0
    hz = st.hz

    def req(tag, reg, dist):
        nonlocal need
        k = (tag, reg)
        if k in hz and hz[k] < dist:
            need = max(need, dist - hz[k])

    isvalu = I.kind in ("valu", "trans", "dot", "permlane", "readlane")
    vsrc = [r for r in I.src if r[0] in "va"]
    vdst = [r for r in I.dst if r[0] in "va"]
    ssrc = [r for r in I.src if r[0] == "s"]
    if I.kind == "mfma":
        for r in I.src:
            req("valu", r, 2)
            req("dot", r, 3)
        for r in I.dst:
            req("dot", r, 3)
        for p, dab, dov in ((4, 8, 6), (8, 12, 10)):
            for r in I.a + I.b:
                req("mf%d" % p, r, dab)
            same = bool(I.c) and I.c == I.dst
            for r in set(I.c + I.dst):
                k = ("mf%d" % p, r)
                if k in hz:
                    if same and st_mfids(st, r) == {(I.c[0], len(I.c), I.op)}:
                        continue
                    req("mf%d" % p, r, dov)
    elif isvalu:
        for r in vsrc + vdst:
            req("mf4", r, 8)
            req("mf8", r, 12)
            if not (I.kind == "dot" and ("dotop", (r, I.op)) in hz and r in vdst and
                    r not in [x for t in I.ops[1:3] for x in parse_regs(t)]):
                req("dot", r, 3)
        for r in vdst:
            req("mc4", r, 3)
            req("mc8", r, 7)
            req("wst", r, 2)
        for r in ssrc:
            req("vs", r, 4 if I.kind == "readlane" else 2)
        if I.dpp or I.kind == "permlane":
            for r in vsrc:
                req("valu", r, 2)
                req("dot", r, 3)
        if I.kind == "readlane":
            for r in vsrc:
                req("valu", r, 1)
        if I.kind != "trans":
            for r in vsrc:
                req("trans", r, 1)
        for r in vsrc + vdst:
            req("opsel", r, 1)
    elif I.kind in ("vmem", "ds"):
        for r in vsrc + vdst:
            req("mf4", r, 8)
            req("mf8", r, 12)
            req("dot", r, 3)
        for r in vdst:
            req("wst", r, 1)
            req("mc4", r, 3)
            req("mc8", r, 7)
        for r in ssrc:
            req("vs", r, 5)
        if I.lds:
            req("m0", ("s", 124), 1)
    elif I.kind in ("salu", "branch", "smem"):
        if I.kind == "branch":
            for r in ssrc:
                req("vs", r, 1)
    return need


def st_mfids(st, r):
    return {k[1][1] for k in st.hz if k[0] == "mfid2" and k[1][0] == r}


def apply(st, I):
    hz = st.hz
    n = 1
    if I.kind == "s_nop":
        n = int(I.ops[0], 0) + 1
    st.age(n)
    wr = set(I.dst)
    if wr:
        for k in [k for k in hz if (k[0] in ("valu", "trans", "dot", "opsel", "vs", "mf4", "mf8") and k[1] in wr)
                  or (k[0] in ("mfid2", "dotop") and k[1][0] in wr)]:
            del hz[k]
    if I.kind == "mfma":
        for r in I.dst:
            hz[("mf%d" % I.passes, r)] = 0
            hz[("mfid2", (r, (I.dst[0], len(I.dst), I.op)))] = 0
        for r in I.c:
            hz[("mc%d" % I.passes, r)] = 0
    elif I.kind in ("valu", "trans", "dot", "permlane", "readlane"):
        for r in I.dst:
            if r[0] == "s":
                hz[("vs", r)] = 0
            elif I.kind == "dot":
                hz[("dot", r)] = 0
                hz[("dotop", (r, I.op))] = 0
            else:
                hz[("valu", r)] = 0
                if I.kind == "trans":
                    hz[("trans", r)] = 0
                if "op_sel" in I.mods or "dst_sel" in I.mods:
                    hz[("opsel", r)] = 0
    elif I.kind == "vmem" and I.wide:
        for r in parse_regs(I.ops[0]):
            hz[("wst", r)] = 0
    elif I.kind == "salu":
        if ("s", 124) in I.dst:
            hz[("m0", ("s", 124))] = 0
    if I.kind == "vmem":
        for k in st.vm:
            st.vm[k] += 1
        for r in I.dst:
            st.vm[r] = 0
        st.vm["ANY"] = 0
    elif I.kind == "ds":
        for k in st.lg:
            st.lg[k] += 1
        for r in I.dst:
            st.lg[r] = 0
        st.lg["LDS"] = 0
    elif I.kind == "smem":
        for k in st.lg:
            st.lg[k] = 0
        for r in I.dst:
            st.lg[r] = -1000
        st.lg["SMEM"] = -1000
    elif I.kind == "s_waitcnt":
        vm, lg = _wait_fields(I.text)
        if vm is not None:
            for k in [k for k, v in st.vm.items() if v >= vm]:
                del st.vm[k]
        if lg is not None:
            for k in [k for k, v in st.lg.items() if (v >= lg and v >= 0) or lg == 0]:
                del st.lg[k]


def need_waits(st, I):
    vm = lg = None
    regs = set(I.src) | set(I.dst)
    for r in regs:
        if r in st.vm:
            v = min(st.vm[r], 63)
            vm = v if vm is None else min(vm, v)
        if r in st.lg:
            v = max(0, min(st.lg[r], 15))
            if "SMEM" in st.lg:
                v = 0
            lg = v if lg is None else min(lg, v)
    if I.kind == "s_barrier" and "nolgkm" not in I.note:
        if "LDS" in st.lg:
            lg = 0
    return vm, lg


class Prog:
    def __init__(self):
        self.items = []

    def __call__(self, s):
        for line in s.split("\n"):
            line = line.strip()
            if line:
                self.items.append(line)

    def label(self, l):
        self.items.append(l + ":")

    def comment(self, c):
        self.items.append("; " + c)

    def finalize(self):
        blocks = []
        cur = [None, []]
        for it in self.items:
            if it.startswith(";") or it.startswith("."):
                cur[1].append(it)
            elif re.match(r"^[\w.$]+:$", it):
                blocks.append(cur)
                cur = [it[:-1], []]
            else:
                I = Ins(it)
                cur[1].append(I)
                if I.kind in ("branch", "s_endpgm"):
                    blocks.append(cur)
                    cur = [None, []]
        blocks.append(cur)
        idx = {b[0]: i for i, b in enumerate(blocks) if b[0]}
        succ = []
        for i, b in enumerate(blocks):
            ins = [x for x in b[1] if isinstance(x, Ins)]
            s = []
            if ins and ins[-1].kind == "branch":
                s.append(idx[ins[-1].target])
                if ins[-1].op != "s_branch" and i + 1 < len(blocks):
                    s.append(i + 1)
            elif ins and ins[-1].kind == "s_endpgm":
                pass
            elif i + 1 < len(blocks):
                s.append(i + 1)
            succ.append(s)

        def transfer(b, st):
            st = st.copy()
            out = []
            for x in b[1]:
                if not isinstance(x, Ins):
                    out.append(x)
                    continue
                vm, lg = need_waits(st, x)
                if vm is not None or lg is not None:
                    w = "s_waitcnt" + (" vmcnt(%d)" % vm if vm is not None else "") + \
                        (" lgkmcnt(%d)" % lg if lg is not None else "")
                    wi = Ins(w)
                    apply(st, wi)
                    out.append(w + " ; auto")
                n = need_nops(st, x)
                while n > 0:
                    k = min(n, 16)
                    ni = Ins("s_nop %d" % (k - 1))
                    apply(st, ni)
                    out.append("s_nop %d ; auto" % (k - 1))
                    n -= k
                apply(st, x)
                out.append(x.text)
            return st, out

        ins_state = [None] * len(blocks)
        work = []
        for i, b in enumerate(blocks):
            if i == 0 or (b[0] and b[0].endswith("_kernel")):
                ins_state[i] = State()
                work.append(i)
        while work:
            i = work.pop(0)
            o, _ = transfer(blocks[i], ins_state[i])
            for s in succ[i]:
                if blocks[s][0] and blocks[s][0].endswith("_kernel"):
                    continue
                if ins_state[s] is None:
                    ins_state[s] = o.copy()
                    work.append(s)
                elif ins_state[s].merge(o):
                    if s not in work:
                        work.append(s)
        lines = []
        for i, b in enumerate(blocks):
            if b[0]:
                lines.append(b[0] + ":")
            st = ins_state[i] if ins_state[i] is not None else State()
            _, out = transfer(b, st)
            lines += ["  " + l if not l.startswith(".") else l for l in out]
        return "\n".join(lines) + "\n"
```

```python
import math
from asmlib import Prog

WS_H2 = 0x000000
WS_MS = 0x300000
WS_WQK = 0x310000
WS_WVO = 0x322000
WS_DBG = 0x400000
WS_BYTES = 268435456
SCALE_LOG2E = (192 ** -0.5) * math.log2(math.e)

KDESC = """.section .rodata,"a"
.p2align 6
.amdhsa_kernel {name}
  .amdhsa_next_free_vgpr {vgpr}
  .amdhsa_next_free_sgpr 102
  .amdhsa_accum_offset {accum}
  .amdhsa_group_segment_fixed_size 0
  .amdhsa_kernarg_size 64
  .amdhsa_user_sgpr_count 2
  .amdhsa_user_sgpr_kernarg_segment_ptr 1
  .amdhsa_system_sgpr_workgroup_id_x 1
.end_amdhsa_kernel
"""


def f2u(x):
    import struct
    return struct.unpack("<I", struct.pack("<f", x))[0]


def hexf(x):
    return "0x%08x" % f2u(x)


def vr(base, n=1):
    return "v%d" % base if n == 1 else "v[%d:%d]" % (base, base + n - 1)


def sr(base, n=1):
    return "s%d" % base if n == 1 else "s[%d:%d]" % (base, base + n - 1)


def make_srd(p, dst, ptr, nbytes):
    p(f"s_mov_b32 s{dst}, s{ptr}")
    p(f"s_mov_b32 s{dst+1}, s{ptr+1}")
    p(f"s_mov_b32 s{dst+2}, {nbytes}")
    p(f"s_mov_b32 s{dst+3}, 0x00020000")
```

```python
from common import *


def fold_setup_scalars(p, s_job, s_tmp):
    q, j, m, sa0, sa1, sb, sst, t = [s_tmp + i for i in range(8)]
    p(f"s_cmp_ge_u32 s{s_job}, 72")
    p(f"s_cselect_b32 s{t}, 72, 0")
    p(f"s_sub_u32 s{q}, s{s_job}, s{t}")
    p(f"s_mul_i32 s{j}, s{q}, 43")
    p(f"s_lshr_b32 s{j}, s{j}, 8")
    p(f"s_mul_i32 s{m}, s{j}, 6")
    p(f"s_sub_u32 s{m}, s{q}, s{m}")
    p(f"s_mul_i32 s{sa0}, s{m}, {32*1152}")
    p(f"s_cmp_ge_u32 s{s_job}, 72")
    p(f"s_cselect_b32 s{t}, 768, 0")
    p(f"s_add_u32 s{sa0}, s{sa0}, s{t}")
    p(f"s_add_u32 s{sa1}, s{sa0}, {4*1152}")
    p(f"s_lshl_b32 s{sst}, s{s_job}, 10")
    p(f"s_add_u32 s{sst}, s{sst}, {WS_WQK}")
    assert WS_WVO == WS_WQK + 72 * 1024


def fold_issue_loads(p, kind, s_tmp, vb, v_lane, srd_wqkv, srd_wo):
    q, j, m, sa0, sa1, sb, sst, t = [s_tmp + i for i in range(8)]
    A0, A1, B = vb, vb + 24, vb + 48
    t0, t1, t2, va, vbo = vb + 72, vb + 73, vb + 74, vb + 75, vb + 76
    p(f"v_and_b32 v{t0}, 15, v{v_lane}")
    p(f"v_lshrrev_b32 v{t1}, 4, v{v_lane}")
    p(f"v_lshrrev_b32 v{t2}, 2, v{t0}")
    p(f"v_lshlrev_b32 v{t2}, 3, v{t2}")
    p(f"v_and_b32 v{va}, 3, v{t0}")
    p(f"v_add_u32 v{t2}, v{t2}, v{va}")
    p(f"v_mul_u32_u24 v{va}, 1152, v{t2}")
    p(f"v_lshl_add_u32 v{va}, v{t1}, 4, v{va}")
    n = 0
    if kind == 0:
        p(f"v_mul_u32_u24 v{vbo}, 1152, v{t0}")
        p(f"v_lshl_add_u32 v{vbo}, v{t1}, 4, v{vbo}")
        p(f"s_mul_i32 s{sb}, s{j}, {16*1152}")
        p(f"s_add_u32 s{sb}, s{sb}, 384")
        for ks in range(6):
            p(f"buffer_load_dwordx4 {vr(B+4*ks,4)}, v{vbo}, {sr(srd_wqkv,4)}, s{sb} offen offset:{64*ks}")
            n += 1
    else:
        p(f"v_mul_u32_u24 v{vbo}, 384, v{t2}")
        p(f"v_lshl_add_u32 v{vbo}, v{t1}, 3, v{vbo}")
        p(f"s_lshl_b32 s{sb}, s{j}, 5")
        for ks in range(6):
            for T in range(2):
                p(f"buffer_load_dwordx2 {vr(B+4*ks+2*T,2)}, v{vbo}, {sr(srd_wo,4)}, s{sb} offen offset:{1536*T}")
                n += 1
            if ks < 5:
                p(f"s_add_u32 s{sb}, s{sb}, 12288")
    for ks in range(6):
        p(f"buffer_load_dwordx4 {vr(A0+4*ks,4)}, v{va}, {sr(srd_wqkv,4)}, s{sa0} offen offset:{64*ks}")
        p(f"buffer_load_dwordx4 {vr(A1+4*ks,4)}, v{va}, {sr(srd_wqkv,4)}, s{sa1} offen offset:{64*ks}")
        n += 2
    return n


def fold_compute(p, kind, s_tmp, vb, v_lane, srd_ws):
    q, j, m, sa0, sa1, sb, sst, t = [s_tmp + i for i in range(8)]
    A0, A1, B = vb, vb + 24, vb + 48
    t0, t1, t2, va, vbo = vb + 72, vb + 73, vb + 74, vb + 75, vb + 76
    acc = vb + 80
    idn = vb + 88
    TR = vb + 92
    if kind == 1:
        p(f"v_and_b32 v{t0}, 15, v{v_lane}")
        p(f"v_lshrrev_b32 v{t1}, 4, v{v_lane}")
        p(f"v_lshlrev_b32 v{t1}, 2, v{t1}")
        p(f"v_sub_u32 v{t0}, v{t0}, v{t1}")
        p(f"v_mov_b32 v{t1}, 0x3f80")
        p(f"v_mov_b32 v{t2}, 0x3f800000")
        p(f"v_cmp_eq_u32 vcc, 0, v{t0}")
        p(f"v_cndmask_b32 v{idn}, 0, v{t1}, vcc")
        p(f"v_cmp_eq_u32 vcc, 1, v{t0}")
        p(f"v_cndmask_b32 v{idn}, v{idn}, v{t2}, vcc")
        p(f"v_cmp_eq_u32 vcc, 2, v{t0}")
        p(f"v_cndmask_b32 v{idn+1}, 0, v{t1}, vcc")
        p(f"v_cmp_eq_u32 vcc, 3, v{t0}")
        p(f"v_cndmask_b32 v{idn+1}, v{idn+1}, v{t2}, vcc")
        for ks in range(6):
            for T in range(2):
                p(f"v_mfma_f32_16x16x16_bf16 {vr(TR+8*ks+4*T,4)}, {vr(B+4*ks+2*T,2)}, {vr(idn,2)}, 0")
        for ks in range(6):
            for i in range(4):
                p(f"v_cvt_pk_bf16_f32 v{B+4*ks+i}, v{TR+8*ks+2*i}, v{TR+8*ks+2*i+1}")
    for ks in range(6):
        c0 = "0" if ks == 0 else vr(acc, 4)
        c1 = "0" if ks == 0 else vr(acc + 4, 4)
        p(f"v_mfma_f32_16x16x32_bf16 {vr(acc,4)}, {vr(A0+4*ks,4)}, {vr(B+4*ks,4)}, {c0}")
        p(f"v_mfma_f32_16x16x32_bf16 {vr(acc+4,4)}, {vr(A1+4*ks,4)}, {vr(B+4*ks,4)}, {c1}")
    if kind == 0:
        for i in range(8):
            p(f"v_mul_f32 v{acc+i}, {hexf(SCALE_LOG2E)}, v{acc+i}")
    for i in range(4):
        p(f"v_cvt_pk_bf16_f32 v{t0+i}, v{acc+2*i}, v{acc+2*i+1}")
    p(f"v_lshlrev_b32 v{acc}, 4, v{v_lane}")
    p(f"buffer_store_dwordx4 {vr(t0,4)}, v{acc}, {sr(srd_ws,4)}, s{sst} offen")


def gen_k0(p):
    name = "k0_kernel"
    p(f".globl {name}\n.p2align 8\n.type {name},@function")
    p.label(name)
    p("s_cmp_ge_u32 s2, 36")
    p("s_cbranch_scc1 k0_exit")
    ht_start(p)
    p("s_load_dwordx16 s[16:31], s[0:1], 0")
    p("v_and_b32 v1, 63, v0")
    p("v_lshrrev_b32 v2, 6, v0")
    p("v_readfirstlane_b32 s3, v2")
    p("s_lshl_b32 s4, s2, 2")
    p("s_add_u32 s4, s4, s3")
    make_srd(p, 32, 22, 192 * 576 * 2)
    make_srd(p, 36, 24, 192 * 192 * 2)
    make_srd(p, 40, 30, WS_BYTES)
    fold_setup_scalars(p, 4, 48)
    p("s_cmp_ge_u32 s4, 72")
    p("s_cbranch_scc1 k0_vo")
    fold_issue_loads(p, 0, 48, 8, 1, 32, 36)
    fold_compute(p, 0, 48, 8, 1, 40)
    ht_end(p, 0, 1, 0)
    p("s_endpgm")
    p.label("k0_vo")
    fold_issue_loads(p, 1, 48, 8, 1, 32, 36)
    fold_compute(p, 1, 48, 8, 1, 40)
    ht_end(p, 0, 1, 0)
    p.label("k0_exit")
    p("s_endpgm")
    return name
```

```python
from common import *
import fold

CH = 36864
TILE = 147456
SP = 159744
YSTR = 784

L = 1
XL = 4
XF = 16
D = 40
HO = 64
QA = 112
KA_ = 136
VA_ = 160
WF = 184
AD = 220
T = 232

S_W = 3
S_N0 = 4
SRD_X = 32
SRD_WQ = 36
SRD_WO = 40
SRD_WS = 44
SRD_WQS = 48
SRD_WOS = 52


def dpp_reduce8(p, v):
    p(f"v_add_f32_dpp v{v}, v{v}, v{v} quad_perm:[1,0,3,2] row_mask:0xf bank_mask:0xf")
    p(f"v_add_f32_dpp v{v}, v{v}, v{v} quad_perm:[2,3,0,1] row_mask:0xf bank_mask:0xf")
    p(f"v_add_f32_dpp v{v}, v{v}, v{v} row_half_mirror row_mask:0xf bank_mask:0xf")


def layernorm(p, X, Dd, t):
    p(f"v_pk_add_f32 {vr(t,2)}, {vr(X,2)}, {vr(X+2,2)}")
    p(f"v_pk_add_f32 {vr(t+2,2)}, {vr(X+4,2)}, {vr(X+6,2)}")
    for i in range(8, 24, 4):
        p(f"v_pk_add_f32 {vr(t,2)}, {vr(t,2)}, {vr(X+i,2)}")
        p(f"v_pk_add_f32 {vr(t+2,2)}, {vr(t+2,2)}, {vr(X+i+2,2)}")
    p(f"v_pk_add_f32 {vr(t,2)}, {vr(t,2)}, {vr(t+2,2)}")
    p(f"v_add_f32 v{t}, v{t}, v{t+1}")
    dpp_reduce8(p, t)
    p(f"v_mul_f32 v{t}, {hexf(1.0/192)}, v{t}")
    p(f"v_sub_f32 v{t+2}, 0, v{t}")
    p(f"v_sub_f32 v{t+3}, 0, v{t}")
    for i in range(0, 24, 2):
        p(f"v_pk_add_f32 {vr(Dd+i,2)}, {vr(X+i,2)}, {vr(t+2,2)}")
    p(f"v_pk_mul_f32 {vr(t+4,2)}, {vr(Dd,2)}, {vr(Dd,2)}")
    p(f"v_pk_mul_f32 {vr(t+6,2)}, {vr(Dd+2,2)}, {vr(Dd+2,2)}")
    for i in range(4, 24, 4):
        p(f"v_pk_fma_f32 {vr(t+4,2)}, {vr(Dd+i,2)}, {vr(Dd+i,2)}, {vr(t+4,2)}")
        p(f"v_pk_fma_f32 {vr(t+6,2)}, {vr(Dd+i+2,2)}, {vr(Dd+i+2,2)}, {vr(t+6,2)}")
    p(f"v_pk_add_f32 {vr(t+4,2)}, {vr(t+4,2)}, {vr(t+6,2)}")
    p(f"v_add_f32 v{t+4}, v{t+4}, v{t+5}")
    dpp_reduce8(p, t + 4)
    p(f"v_mov_b32 v{t+5}, {hexf(1e-5)}")
    p(f"v_fmac_f32 v{t+5}, {hexf(1.0/192)}, v{t+4}")
    p(f"v_rsq_f32 v{t+2}, v{t+5}")
    p(f"v_mov_b32 v{t+3}, v{t+2}")


import os
DBG = os.environ.get("K1_DBG", "")


def dump(p, stage, base, n):
    if DBG != stage:
        return
    lab = "k1_dbgskip_" + stage
    p("s_cmp_ge_u32 s2, 64")
    p(f"s_cbranch_scc1 {lab}")
    p(f"s_mul_i32 s60, s5, {32*256}")
    p(f"s_add_u32 s60, s60, {WS_DBG}")
    p(f"v_lshlrev_b32 v255, 2, v{L}")
    for i in range(n):
        p(f"buffer_store_dword v{base+i}, v255, {sr(SRD_WS,4)}, s60 offen")
        p("s_add_u32 s60, s60, 256")
    p.label(lab)


def gen_k1(p, with_fold=False):
    name = "k1_kernel"
    p(f".globl {name}\n.p2align 8\n.type {name},@function")
    p.label(name)
    p("s_cmp_ge_u32 s2, 256")
    p("s_cbranch_scc1 k1_exit")
    p("s_load_dwordx16 s[16:31], s[0:1], 0")
    p(f"v_and_b32 v{L}, 63, v0")
    p("v_lshrrev_b32 v2, 6, v0")
    p(f"v_readfirstlane_b32 s{S_W}, v2")
    p(f"s_lshl_b32 s{S_N0}, s2, 2")
    make_srd(p, SRD_X, 16, 8 * 1024 * 192 * 2)
    make_srd(p, SRD_WQ, 18, 192 * 576 * 2)
    make_srd(p, SRD_WO, 20, 192 * 192 * 2)
    make_srd(p, SRD_WS, 30, WS_BYTES)
    p(f"s_cmp_ge_u32 s{S_W}, 4")
    p("s_cbranch_scc1 k1_loader")

    p(f"v_lshrrev_b32 v2, 3, v{L}")
    p(f"v_and_b32 v3, 7, v{L}")
    p(f"v_mul_u32_u24 v{T}, 393216, v2")
    p(f"v_lshl_add_u32 v{T}, v3, 4, v{T}")
    p(f"s_add_u32 s5, s{S_N0}, s{S_W}")
    p("s_mul_i32 s6, s5, 384")
    for a in range(3):
        p(f"buffer_load_dwordx4 {vr(XL+4*a,4)}, v{T}, {sr(SRD_X,4)}, s6 offen offset:{a*128}")
    p(f"v_lshrrev_b32 v{T+1}, 4, v{L}")
    p(f"v_bfe_u32 v{T+2}, v{L}, 2, 2")
    p(f"v_lshl_add_u32 v{T+2}, v{T+1}, 3, v{T+2}")
    p(f"v_mul_u32_u24 v{T+2}, 384, v{T+2}")
    p(f"v_and_b32 v{T+3}, 1, v{L}")
    p(f"v_lshl_add_u32 v{T+2}, v{T+3}, 3, v{T+2}")
    p(f"v_bfe_u32 v{T+3}, v{L}, 3, 1")
    p(f"v_bfe_u32 v{T+4}, v{L}, 4, 1")
    p(f"v_lshlrev_b32 v{T+3}, 2, v{T+3}")
    p(f"v_lshl_or_b32 v{T+3}, v{T+4}, 1, v{T+3}")
    p(f"v_bfe_u32 v{T+4}, v{L}, 1, 1")
    p(f"s_mul_i32 s7, s{S_W}, 6")
    p(f"v_add_u32 v{T+4}, s7, v{T+4}")
    for jj in range(3):
        p(f"v_add_u32 v{T+5}, {2*jj}, v{T+4}")
        p(f"v_xor_b32 v{T+5}, v{T+5}, v{T+3}")
        p(f"v_lshl_add_u32 v{AD+jj}, v{T+5}, 4, v{T+2}")
        p(f"v_add_u32 v{AD+3+jj}, {2*CH}, v{AD+jj}")
    TR = AD + 6
    p(f"v_and_b32 v{T+2}, 15, v{L}")
    p(f"v_bfe_u32 v{T+3}, v{L}, 1, 3")
    p(f"v_xor_b32 v{T+3}, v{T+3}, v{T+1}")
    p(f"v_mul_u32_u24 v{T+2}, 384, v{T+2}")
    p(f"v_add_u32 v{T+2}, {TILE}, v{T+2}")
    p(f"v_lshl_add_u32 v{TR}, v{T+3}, 4, v{T+2}")
    p(f"v_xor_b32 v{T+3}, 4, v{T+3}")
    p(f"v_lshl_add_u32 v{TR+1}, v{T+3}, 4, v{T+2}")
    OW = AD + 8
    p(f"v_bfe_u32 v{T+3}, v{L}, 1, 3")
    p(f"v_bfe_u32 v{T+4}, v{L}, 4, 1")
    p(f"v_lshl_add_u32 v{T+2}, v{T+4}, 3, v{T+2}")
    p(f"v_lshrrev_b32 v{T+4}, 5, v{L}")
    p(f"v_add_u32 v{T+4}, s7, v{T+4}")
    for jj in range(3):
        p(f"v_add_u32 v{T+5}, {2*jj}, v{T+4}")
        p(f"v_xor_b32 v{T+5}, v{T+5}, v{T+3}")
        p(f"v_lshl_add_u32 v{OW+jj}, v{T+5}, 4, v{T+2}")
    HW = AD + 11
    p(f"s_lshl_b32 s8, s{S_W}, 3")
    p(f"v_add_u32 v{T+2}, s8, v2")
    p(f"v_bfe_u32 v{T+3}, v{T+2}, 1, 3")
    p(f"v_xor_b32 v{T+3}, v{T+3}, v3")
    p(f"v_mul_u32_u24 v{T+4}, 384, v{T+2}")
    p(f"v_lshl_add_u32 v{HW}, v{T+3}, 4, v{T+4}")
    p(f"v_add_u32 v{HW}, {TILE}, v{HW}")
    YR = 2
    p(f"v_mul_u32_u24 v{T+4}, {YSTR}, v{T+2}")
    p(f"v_lshl_add_u32 v{YR}, v3, 5, v{T+4}")
    for i in range(12):
        p(f"v_lshlrev_b32 v{XF+2*i}, 16, v{XL+i}")
        p(f"v_and_b32 v{XF+2*i+1}, 0xffff0000, v{XL+i}")
    layernorm(p, XF, D, T)
    for i in range(0, 24, 2):
        p(f"v_pk_mul_f32 {vr(D+i,2)}, {vr(D+i,2)}, {vr(T+2,2)}")
    for i in range(12):
        p(f"v_cvt_pk_bf16_f32 v{XL+i}, v{D+2*i}, v{D+2*i+1}")
    for a in range(3):
        p(f"ds_write_b128 v{HW}, {vr(XL+4*a,4)} offset:{a*128}")
    dump(p, "h", XL, 12)

    def read_operand():
        for tt in range(2):
            for ks in range(6):
                p(f"ds_read_b128 {vr(HO+24*tt+4*ks,4)}, v{TR+(ks&1)} offset:{tt*6144+(ks>>1)*128}")

    def wfrag_reads(chunk):
        slot = chunk % 4
        base = AD if slot < 2 else AD + 3
        imm0 = (slot & 1) * CH
        for ks in range(3):
            for jj in range(3):
                f = WF + 4 * (ks * 3 + jj)
                for h in range(2):
                    p(f"ds_read_b64_tr_b16 {vr(f+2*h,2)}, v{base+jj} offset:{imm0+ks*12288+h*1536}")

    def gemm_chunk(chunk, accbase, w_is_a):
        half = chunk & 1
        wfrag_reads(chunk)
        for ks in range(3):
            for jj in range(3):
                f = WF + 4 * (ks * 3 + jj)
                for tt in range(2):
                    a = accbase + 8 * jj + 4 * tt
                    c = "0" if (half == 0 and ks == 0) else vr(a, 4)
                    h = vr(HO + 24 * tt + 4 * (3 * half + ks), 4)
                    if w_is_a:
                        p(f"v_mfma_f32_16x16x32_bf16 {vr(a,4)}, {vr(f,4)}, {h}, {c}")
                    else:
                        p(f"v_mfma_f32_16x16x32_bf16 {vr(a,4)}, {h}, {vr(f,4)}, {c}")

    def pack(accbase, dst):
        for jj in range(3):
            for tt in range(2):
                a = accbase + 8 * jj + 4 * tt
                d = dst + 4 * jj + 2 * tt
                p(f"v_cvt_pk_bf16_f32 v{d}, v{a}, v{a+1}")
                p(f"v_cvt_pk_bf16_f32 v{d+1}, v{a+2}, v{a+3}")

    p("s_barrier ; B0")
    read_operand()
    gemm_chunk(0, QA, True)
    p("s_barrier ; B1")
    gemm_chunk(1, QA, True)
    p("s_barrier ; B2")
    gemm_chunk(2, KA_, True)
    p("s_barrier ; B3")
    gemm_chunk(3, KA_, True)
    QP0, KP0 = D, D + 12
    for tt in range(2):
        for jj in range(3):
            a = QA + 8 * jj + 4 * tt
            d = QP0 + 6 * tt + 2 * jj
            p(f"v_cvt_pk_bf16_f32 v{d}, v{a}, v{a+1}")
            p(f"v_cvt_pk_bf16_f32 v{d+1}, v{a+2}, v{a+3}")
            a = KA_ + 8 * jj + 4 * tt
            d = KP0 + 6 * tt + 2 * jj
            p(f"v_cvt_pk_bf16_f32 v{d}, v{a}, v{a+1}")
            p(f"v_cvt_pk_bf16_f32 v{d+1}, v{a+2}, v{a+3}")
    dump(p, "qk", D, 24)
    SA = QA
    for tt in range(2):
        p(f"v_mfma_f32_16x16x32_bf16 {vr(SA+4*tt,4)}, {vr(KP0+6*tt,4)}, {vr(QP0+6*tt,4)}, 0")
    for tt in range(2):
        p(f"v_mfma_f32_16x16x16_bf16 {vr(SA+4*tt,4)}, {vr(KP0+6*tt+4,2)}, {vr(QP0+6*tt+4,2)}, {vr(SA+4*tt,4)}")
    SPW = T + 8
    SPR = T + 9
    p(f"v_lshrrev_b32 v{T}, 4, v{L}")
    p(f"v_and_b32 v{T+1}, 7, v{L}")
    p(f"v_lshl_add_u32 v{T}, v{T}, 3, v{T+1}")
    p(f"v_lshlrev_b32 v{T}, 4, v{T}")
    p(f"v_add_u32 v{SPR}, {SP}, v{T}")
    p(f"s_lshl_b32 s8, s{S_W}, 10")
    p(f"v_add_u32 v{SPW}, s8, v{SPR}")
    p("s_mov_b32 s10, 0x00FF00FF")
    p("s_mov_b32 s11, 0xFF00FF00")
    p("s_mov_b64 exec, s[10:11]")
    for tt in range(2):
        p(f"ds_write_b128 v{SPW}, {vr(SA+4*tt,4)} offset:{tt*512}")
    p("s_mov_b64 exec, -1")
    p("s_barrier ; B4")
    SR = QA + 8
    for tt in range(2):
        for w in range(4):
            p(f"ds_read_b128 {vr(SR+16*tt+4*w,4)}, v{SPR} offset:{w*1024+tt*512}")
    gemm_chunk(4, VA_, False)
    PP = D
    c1 = (192 ** -0.5) * math.log2(math.e)
    for tt in range(2):
        s = SR + 16 * tt
        for r in range(4):
            p(f"v_add_f32 v{s+r}, v{s+r}, v{s+4+r}")
            p(f"v_add_f32 v{s+8+r}, v{s+8+r}, v{s+12+r}")
            p(f"v_add_f32 v{s+r}, v{s+r}, v{s+8+r}")
            p(f"v_mul_f32 v{s+r}, {hexf(c1)}, v{s+r}")
        p(f"v_max3_f32 v{T}, v{s}, v{s+1}, v{s+2}")
        p(f"v_max_f32 v{T}, v{T}, v{s+3}")
        p(f"v_mov_b32 v{T+1}, v{T}")
        p(f"v_permlane16_swap_b32 v{T}, v{T+1}")
        p(f"v_max_f32 v{T}, v{T}, v{T+1}")
        for r in range(4):
            p(f"v_sub_f32 v{s+r}, v{s+r}, v{T}")
            p(f"v_exp_f32 v{s+r}, v{s+r}")
        p(f"v_add_f32 v{T}, v{s}, v{s+1}")
        p(f"v_add_f32 v{T+1}, v{s+2}, v{s+3}")
        p(f"v_add_f32 v{T}, v{T}, v{T+1}")
        p(f"v_mov_b32 v{T+1}, v{T}")
        p(f"v_permlane16_swap_b32 v{T}, v{T+1}")
        p(f"v_add_f32 v{T}, v{T}, v{T+1}")
        p(f"v_rcp_f32 v{T}, v{T}")
        for r in range(4):
            p(f"v_mul_f32 v{s+r}, v{s+r}, v{T}")
        p(f"v_cvt_pk_bf16_f32 v{PP+2*tt}, v{s}, v{s+1}")
        p(f"v_cvt_pk_bf16_f32 v{PP+2*tt+1}, v{s+2}, v{s+3}")
        p("s_mov_b64 vcc, s[10:11]")
        p(f"v_cndmask_b32 v{PP+2*tt}, 0, v{PP+2*tt}, vcc")
        p(f"v_cndmask_b32 v{PP+2*tt+1}, 0, v{PP+2*tt+1}, vcc")
    dump(p, "p", PP, 4)
    p("s_barrier ; B5")
    gemm_chunk(5, VA_, False)
    VP = D + 4
    pack(VA_, VP)
    dump(p, "v", VP, 12)
    OA = QA
    for jj in range(3):
        for tt in range(2):
            p(f"v_mfma_f32_16x16x16_bf16 {vr(OA+8*jj+4*tt,4)}, {vr(VP+4*jj+2*tt,2)}, {vr(PP+2*tt,2)}, 0")
    pack(OA, VP)
    dump(p, "o", VP, 12)
    for jj in range(3):
        for tt in range(2):
            p(f"ds_write_b64 v{OW+jj}, {vr(VP+4*jj+2*tt,2)} offset:{tt*6144}")
    p("s_barrier ; B6")
    read_operand()
    YA = VA_
    gemm_chunk(6, YA, True)
    p("s_barrier ; B7")
    gemm_chunk(7, YA, True)
    dump(p, "y", YA, 24)
    p(f"v_and_b32 v{T}, 15, v{L}")
    p(f"v_mul_u32_u24 v{T}, {YSTR}, v{T}")
    p(f"v_lshrrev_b32 v{T+1}, 4, v{L}")
    p(f"v_lshl_add_u32 v{T}, v{T+1}, 4, v{T}")
    p(f"s_mul_i32 s8, s{S_W}, 192")
    p(f"v_add_u32 v{T}, s8, v{T}")
    for jj in range(3):
        for tt in range(2):
            p(f"ds_write_b128 v{T}, {vr(YA+8*jj+4*tt,4)} offset:{tt*16*YSTR+jj*64}")
    p("s_barrier ; B8")
    for a in range(3):
        for h in range(2):
            p(f"ds_read_b128 {vr(D+8*a+4*h,4)}, v{YR} offset:{a*256+h*16}")
    for i in range(0, 24, 2):
        p(f"v_pk_add_f32 {vr(XF+i,2)}, {vr(XF+i,2)}, {vr(D+i,2)}")
    layernorm(p, XF, D, T)
    for i in range(0, 24, 2):
        p(f"v_pk_mul_f32 {vr(D+i,2)}, {vr(D+i,2)}, {vr(T+2,2)}")
    for i in range(12):
        p(f"v_cvt_pk_bf16_f32 v{XL+i}, v{D+2*i}, v{D+2*i+1}")
    p("s_bfe_u32 s8, s5, 0x10001")
    p("s_lshl_b32 s8, s8, 2")
    p("s_bfe_u32 s9, s5, 0x10003")
    p("s_lshl_b32 s9, s9, 1")
    p("s_or_b32 s8, s8, s9")
    p("s_bfe_u32 s9, s5, 0x10002")
    p("s_or_b32 s8, s8, s9")
    p(f"v_lshrrev_b32 v{T+6}, 3, v{L}")
    p(f"v_mul_u32_u24 v{T+7}, 393216, v{T+6}")
    p(f"v_xor_b32 v{T+8}, s8, v3")
    p(f"v_lshl_add_u32 v{T+7}, v{T+8}, 4, v{T+7}")
    for a in range(3):
        p(f"buffer_store_dwordx4 {vr(XL+4*a,4)}, v{T+7}, {sr(SRD_WS,4)}, s6 offen offset:{a*128}")
    p(f"v_mul_f32 v{T+1}, v{T+5}, v{T+2}")
    p(f"v_lshlrev_b32 v{T+7}, 13, v{T+6}")
    p("s_lshl_b32 s9, s5, 3")
    p(f"s_add_u32 s9, s9, {WS_MS}")
    p("s_mov_b32 s10, 0x01010101")
    p("s_mov_b32 s11, 0x01010101")
    p("s_mov_b64 exec, s[10:11]")
    p(f"buffer_store_dwordx2 {vr(T,2)}, v{T+7}, {sr(SRD_WS,4)}, s9 offen")
    p("s_endpgm")

    p.label("k1_loader")
    S_LW = 7
    p(f"s_sub_u32 s{S_LW}, s{S_W}, 4")
    VQ = 4
    VO = 8
    for u in range(3):
        p(f"s_lshl_b32 s8, s{S_LW}, 6")
        p(f"s_add_u32 s8, s8, {256*u}")
        p(f"v_add_u32 v12, s8, v{L}")
        p("v_mul_u32_u24 v13, 2731, v12")
        p("v_lshrrev_b32 v13, 16, v13")
        p("v_mul_u32_u24 v14, 24, v13")
        p("v_sub_u32 v14, v12, v14")
        p("v_and_b32 v15, 2, v13")
        p("v_lshlrev_b32 v15, 1, v15")
        p("v_bfe_u32 v16, v13, 3, 1")
        p("v_lshl_or_b32 v15, v16, 1, v15")
        p("v_xor_b32 v14, v14, v15")
        p("v_lshlrev_b32 v14, 4, v14")
        p(f"v_mul_u32_u24 v15, 1152, v13")
        p(f"v_add_u32 v{VQ+u}, v15, v14")
        p(f"v_mul_u32_u24 v15, 384, v13")
        p(f"v_add_u32 v{VO+u}, v15, v14")
    p(f"s_lshl_b32 s12, s{S_LW}, 10")

    def issue_chunk(c):
        slot = c % 4
        half = c & 1
        for ks in range(3):
            if c < 6:
                soff = (96 * half + 32 * ks) * 1152 + (c >> 1) * 384
                srd, vo = SRD_WQ, VQ
            else:
                soff = (96 * half + 32 * ks) * 384
                srd, vo = SRD_WO, VO
            p(f"s_mov_b32 s13, {soff}")
            for u in range(3):
                p(f"s_add_u32 m0, s12, {slot*CH + ks*12288 + u*4096}")
                p(f"buffer_load_dwordx4 v{vo+u}, {sr(srd,4)}, s13 offen lds")
    for c in range(4):
        issue_chunk(c)
    waits = [27, 18, 18, 18, 18, 18, 9, 0]
    for b in range(8):
        p(f"s_waitcnt vmcnt({waits[b]})")
        p(f"s_barrier ; B{b}")
        if 1 <= b <= 4:
            issue_chunk(b + 3)
    p.label("k1_exit")
    p("s_endpgm")
    return name
```

```python
from common import *

SLOT = 12288
TILE = 147456
STATS = 159744
THR = 16.0

V_LANE = 1
KA = 2
VA = 6
V_L = 10
V_M = 11
V_THR = 12
V_LC = 13
T14, T15 = 14, 15
O = 16
QP = 112
NEGM = 160
S = 176
P = 192
T = 200
KF = 208
VF = 224
X = 248

S_W = 3
S_T = 4
S_I = 5
S_R = 6
SRD_WS = 32
SRD_OUT = 36


def emit_pi_token(p, dst, lam, tmp):
    p(f"v_add_u32 v{dst}, 4, v{lam}")
    p(f"v_cmp_gt_u32 vcc, 4, v{lam}")
    p(f"v_cndmask_b32 v{dst}, v{dst}, v{lam}, vcc")
    p(f"v_subrev_u32 v{tmp}, 8, v{lam}")
    p(f"v_cmp_lt_u32 vcc, 11, v{lam}")
    p(f"v_cndmask_b32 v{dst}, v{dst}, v{tmp}, vcc")


def emit_fsw(p, dst, row, tmp):
    p(f"v_and_b32 v{dst}, 2, v{row}")
    p(f"v_lshlrev_b32 v{dst}, 1, v{dst}")
    p(f"v_bfe_u32 v{tmp}, v{row}, 3, 1")
    p(f"v_lshl_or_b32 v{dst}, v{tmp}, 1, v{dst}")
    p(f"v_bfe_u32 v{tmp}, v{row}, 2, 1")
    p(f"v_or_b32 v{dst}, v{dst}, v{tmp}")


def tile_wr_addrs(p, dst3, s_w4, lane, t0, t1, t2, t3, base):
    p(f"v_and_b32 v{t0}, 15, v{lane}")
    emit_pi_token(p, t1, t0, t2)
    emit_fsw(p, t2, t1, t3)
    p(f"v_mul_u32_u24 v{t1}, 384, v{t1}")
    p(f"v_bfe_u32 v{t3}, v{lane}, 4, 1")
    p(f"v_lshl_add_u32 v{t1}, v{t3}, 3, v{t1}")
    p(f"v_add_u32 v{t1}, {base}, v{t1}")
    p(f"v_lshrrev_b32 v{t0}, 5, v{lane}")
    p(f"s_mul_i32 s{s_w4+1}, s{s_w4}, 6")
    p(f"v_add_u32 v{t0}, s{s_w4+1}, v{t0}")
    for jj in range(3):
        p(f"v_add_u32 v{t3}, {2*jj}, v{t0}")
        p(f"v_xor_b32 v{t3}, v{t3}, v{t2}")
        p(f"v_lshl_add_u32 v{dst3+jj}, v{t3}, 4, v{t1}")


def b16_addrs(p, dst2, lane, t0, t1, t2, t3, base):
    p(f"v_and_b32 v{t0}, 15, v{lane}")
    emit_pi_token(p, t1, t0, t2)
    emit_fsw(p, t2, t1, t3)
    p(f"v_mul_u32_u24 v{t1}, 384, v{t1}")
    p(f"v_add_u32 v{t1}, {base}, v{t1}")
    p(f"v_lshrrev_b32 v{t0}, 4, v{lane}")
    p(f"v_xor_b32 v{t0}, v{t0}, v{t2}")
    p(f"v_lshl_add_u32 v{dst2}, v{t0}, 4, v{t1}")
    p(f"v_xor_b32 v{t0}, 4, v{t0}")
    p(f"v_lshl_add_u32 v{dst2+1}, v{t0}, 4, v{t1}")


def gen_k2(p, dbg=False):
    name = "k2_kernel"
    p(f".globl {name}\n.p2align 8\n.type {name},@function")
    p.label(name)
    p("s_cmp_ge_u32 s2, 256")
    p("s_cbranch_scc1 k2_exit")
    p("s_load_dwordx16 s[16:31], s[0:1], 0")
    p(f"v_and_b32 v{V_LANE}, 63, v0")
    p("v_lshrrev_b32 v2, 6, v0")
    p(f"v_readfirstlane_b32 s{S_W}, v2")
    p(f"s_and_b32 s{S_T}, s2, 7")
    p(f"s_lshr_b32 s{S_I}, s2, 3")
    make_srd(p, SRD_WS, 30, WS_BYTES)
    make_srd(p, SRD_OUT, 26, 8 * 1024 * 192 * 2)
    p(f"s_cmp_ge_u32 s{S_W}, 4")
    p("s_cbranch_scc1 k2_loader")

    L = V_LANE
    def wq(n):
        return QP + 4 * n if n < 12 else VF + 4 * (n - 12)
    p(f"v_lshlrev_b32 v{T14}, 4, v{L}")
    p(f"s_mul_i32 s8, s{S_W}, 18432")
    p(f"s_add_u32 s8, s8, {WS_WQK}")
    for n in range(18):
        p(f"buffer_load_dwordx4 {vr(wq(n),4)}, v{T14}, {sr(SRD_WS,4)}, s8 offen offset:{(n%4)*1024}")
        if n % 4 == 3:
            p("s_add_u32 s8, s8, 4096")
    for i in range(96):
        p(f"v_mov_b32 v{O+i}, 0")
    p(f"v_and_b32 v{T}, 31, v{L}")
    emit_fsw(p, T + 1, T, T + 2)
    p(f"v_lshrrev_b32 v{T+2}, 5, v{L}")
    p(f"v_xor_b32 v{T+1}, v{T+1}, v{T+2}")
    p(f"v_mul_u32_u24 v{T}, 384, v{T}")
    for j in range(4):
        p(f"v_xor_b32 v{T+3}, {2*j}, v{T+1}")
        p(f"v_lshl_add_u32 v{KA+j}, v{T+3}, 4, v{T}")
    p(f"v_bfe_u32 v{T}, v{L}, 2, 2")
    p(f"v_lshl_add_u32 v{T}, v{T+2}, 2, v{T}")
    p(f"v_mul_u32_u24 v{T}, 384, v{T}")
    p(f"v_and_b32 v{T+3}, 1, v{L}")
    p(f"v_lshl_add_u32 v{T}, v{T+3}, 3, v{T}")
    p(f"v_bfe_u32 v{T+3}, v{L}, 4, 1")
    p(f"v_bfe_u32 v{T+4}, v{L}, 1, 1")
    p(f"v_lshl_add_u32 v{T+3}, v{T+3}, 1, v{T+4}")
    p(f"v_add_u32 v{T+3}, s{S_W}, v{T+3}")
    p(f"v_and_b32 v{T+3}, 3, v{T+3}")
    p(f"v_bfe_u32 v{T+4}, v{L}, 3, 1")
    p(f"v_lshl_or_b32 v{T+4}, v{T+4}, 2, v{T+2}")
    p(f"v_xor_b32 v{T+3}, v{T+3}, v{T+4}")
    for par in range(2):
        for half in range(2):
            p(f"v_xor_b32 v{T+4}, {4*par + 2*half}, v{T+3}")
            p(f"v_lshl_add_u32 v{VA+2*par+half}, v{T+4}, 4, v{T}")
            if half:
                p(f"v_add_u32 v{VA+2*par+half}, {8*384}, v{VA+2*par+half}")
    BA = X
    WA = X + 2
    b16_addrs(p, BA, L, T, T + 1, T + 2, T + 3, 0)
    tile_wr_addrs(p, WA, S_W_TMP(p), L, T, T + 1, T + 2, T + 3, TILE)
    p(f"v_mov_b32 v{V_L}, 0")
    p(f"v_mov_b32 v{V_M}, 0")
    p(f"v_mov_b32 v{V_THR}, 0xff800000")
    p(f"v_mov_b32 v{V_LC}, 0xff800000")
    p("s_barrier ; BAR_A")
    def acc(jj, tt):
        n = jj * 2 + tt
        return KF + 4 * n if n < 4 else T + 4 * (n - 4)
    for tt in range(2):
        for m in range(6):
            p(f"ds_read_b128 {vr(NEGM+4*m,4)}, v{BA+(m&1)} offset:{tt*6144+(m>>1)*128}")
        for m in range(6):
            for jj in range(3):
                c = "0" if m == 0 else vr(acc(jj, tt), 4)
                p(f"v_mfma_f32_16x16x32_bf16 {vr(acc(jj,tt),4)}, {vr(wq(jj*6+m),4)}, {vr(NEGM+4*m,4)}, {c}")
    for tt in range(2):
        for jj in range(3):
            a = acc(jj, tt)
            p(f"v_cvt_pk_bf16_f32 v{a}, v{a}, v{a+1}")
            p(f"v_cvt_pk_bf16_f32 v{a+1}, v{a+2}, v{a+3}")
            p(f"ds_write_b64 v{WA+jj}, {vr(a,2)} offset:{tt*6144}")
    p("s_barrier ; BAR_B")
    for j in range(4):
        p(f"v_add_u32 v{T+j}, {TILE}, v{KA+j}")
    for s in range(12):
        p(f"ds_read_b128 {vr(QP+4*s,4)}, v{T+(s&3)} offset:{(s>>2)*128}")
    for i in range(16):
        p(f"v_mov_b32 v{NEGM+i}, 0")
    p(f"s_mul_i32 s8, s{S_W}, {SLOT}")
    for j in range(4):
        p(f"v_add_u32 v{KA+j}, s8, v{KA+j}")
        p(f"v_add_u32 v{VA+j}, s8, v{VA+j}")
    p(f"s_mov_b32 s{S_R}, 0")
    p("s_mov_b32 s9, 0")
    p.label("k2_loop")
    def kread(s):
        p(f"ds_read_b128 {vr(KF+4*(s&3),4)}, v{KA+(s&3)} offset:{(s>>2)*128}")
    for s in range(4):
        kread(s)
    for s in range(12):
        c = vr(NEGM, 16) if s == 0 else vr(S, 16)
        p(f"v_mfma_f32_32x32x16_bf16 {vr(S,16)}, {vr(KF+4*(s&3),4)}, {vr(QP+4*s,4)}, {c}")
        if s + 4 < 12:
            kread(s + 4)
    def vread(kap, ct, dst):
        for half in range(2):
            p(f"ds_read_b64_tr_b16 {vr(dst+2*half,2)}, v{VA+2*(ct&1)+half} offset:{kap*6144+(ct>>1)*128}")
    for ct in range(6):
        vread(0, ct, VF + 4 * ct)
    p(f"v_max3_f32 v{T}, v{S}, v{S+1}, v{S+2}")
    for i in range(3, 15, 2):
        p(f"v_max3_f32 v{T}, v{T}, v{S+i}, v{S+i+1}")
    p(f"v_max_f32 v{T}, v{T}, v{S+15}")
    p(f"v_cmp_gt_f32 vcc, v{T}, v{V_THR}")
    p("s_cbranch_vccnz k2_slow")
    p.label("k2_back")
    for i in range(16):
        p(f"v_exp_f32 v{S+i}, v{S+i}")
    for i in range(16):
        p(f"v_add_f32 v{V_L}, v{V_L}, v{S+i}")
    for i in range(8):
        p(f"v_cvt_pk_bf16_f32 v{P+i}, v{S+2*i}, v{S+2*i+1}")
    for ct in range(6):
        p(f"v_mfma_f32_32x32x16_bf16 {vr(O+16*ct,16)}, {vr(VF+4*ct,4)}, {vr(P,4)}, {vr(O+16*ct,16)}")
        vread(1, ct, VF + 4 * ct)
    for ct in range(6):
        p(f"v_mfma_f32_32x32x16_bf16 {vr(O+16*ct,16)}, {vr(VF+4*ct,4)}, {vr(P+4,4)}, {vr(O+16*ct,16)}")
    p(f"s_cmp_eq_u32 s{S_R}, 7")
    p("s_cbranch_scc1 k2_fin")
    p(f"s_add_u32 s{S_R}, s{S_R}, 1")
    p("s_add_u32 s9, s9, 1")
    p("s_cmp_eq_u32 s9, 3")
    p(f"s_mov_b32 s10, {-98304 & 0xffffffff}")
    p(f"s_cselect_b32 s10, s10, 49152")
    p("s_cselect_b32 s9, 0, s9")
    for j in range(4):
        p(f"v_add_u32 v{KA+j}, s10, v{KA+j}")
        p(f"v_add_u32 v{VA+j}, s10, v{VA+j}")
    p("s_barrier ; BAR_r")
    p("s_branch k2_loop")

    p.label("k2_slow")
    p(f"v_mov_b32 v{T+1}, v{T}")
    p(f"v_permlane32_swap_b32 v{T}, v{T+1}")
    p(f"v_max_f32 v{T}, v{T}, v{T+1}")
    p(f"v_max_f32 v{T}, v{T}, v{V_LC}")
    p(f"v_max_f32 v{T+1}, 0, v{T}")
    p(f"v_exp_f32 v{T+1}, -v{T+1}")
    p(f"v_add_f32 v{V_M}, v{V_M}, v{T}")
    for i in range(16):
        p(f"v_sub_f32 v{S+i}, v{S+i}, v{T}")
    for i in range(16):
        p(f"v_sub_f32 v{NEGM+i}, 0, v{V_M}")
    p(f"v_mul_f32 v{V_L}, v{V_L}, v{T+1}")
    for i in range(96):
        p(f"v_mul_f32 v{O+i}, v{O+i}, v{T+1}")
    p(f"v_mov_b32 v{V_THR}, {hexf(THR)}")
    p(f"v_mov_b32 v{V_LC}, 0")
    p("s_branch k2_back")

    p.label("k2_fin")
    p(f"s_lshl_b32 s8, s{S_W}, 9")
    p(f"s_add_u32 s8, s8, {STATS}")
    p(f"v_lshlrev_b32 v{T}, 3, v{L}")
    p(f"v_add_u32 v{T}, s8, v{T}")
    p(f"ds_write_b64 v{T}, {vr(V_L,2)}")
    p(f"v_lshlrev_b32 v{T+1}, 4, v{L}")
    for G in range(1, 4):
        p(f"s_add_u32 s8, s{S_W}, {G}")
        p("s_and_b32 s8, s8, 3")
        p("s_mul_i32 s8, s8, 3")
        p(f"s_add_u32 s8, s8, {G-1}")
        p("s_mul_i32 s10, s8, 6144")
        p("s_cmp_ge_u32 s8, 8")
        p(f"s_cselect_b32 s11, {98304-8*6144}, 0")
        p("s_add_u32 s10, s10, s11")
        p(f"v_add_u32 v{T+2}, s10, v{T+1}")
        for ct in range(6):
            p(f"ds_write_b128 v{T+2}, {vr(O+16*ct+4*G,4)} offset:{ct*1024}")
    p("s_barrier ; BAR_7")
    p(f"v_and_b32 v{T}, 31, v{L}")
    p(f"v_lshlrev_b32 v{T}, 3, v{T}")
    p(f"v_add_u32 v{T}, {STATS}, v{T}")
    ST = KF
    for w in range(4):
        for hh in range(2):
            p(f"ds_read_b64 {vr(ST+4*w+2*hh,2)}, v{T} offset:{w*512+hh*256}")
    def rd(G, ct):
        n = (G - 1) * 6 + ct
        return QP + 4 * n if n < 12 else VF + 4 * (n - 12)
    for G in range(1, 4):
        p(f"s_mul_i32 s8, s{S_W}, 3")
        p(f"s_add_u32 s8, s8, {G-1}")
        p("s_mul_i32 s10, s8, 6144")
        p("s_cmp_ge_u32 s8, 8")
        p(f"s_cselect_b32 s11, {98304-8*6144}, 0")
        p("s_add_u32 s10, s10, s11")
        p(f"v_add_u32 v{T+2}, s10, v{T+1}")
        for ct in range(6):
            p(f"ds_read_b128 {vr(rd(G,ct),4)}, v{T+2} offset:{ct*1024}")
    p(f"v_max3_f32 v{T+3}, v{ST+1}, v{ST+5}, v{ST+9}")
    p(f"v_max_f32 v{T+3}, v{T+3}, v{ST+13}")
    for w in range(4):
        p(f"v_sub_f32 v{ST+4*w+1}, v{ST+4*w+1}, v{T+3}")
        p(f"v_exp_f32 v{ST+4*w+1}, v{ST+4*w+1}")
        p(f"v_add_f32 v{ST+4*w}, v{ST+4*w}, v{ST+4*w+2}")
    p(f"v_mul_f32 v{T+4}, v{ST}, v{ST+1}")
    for w in range(1, 4):
        p(f"v_fmac_f32 v{T+4}, v{ST+4*w}, v{ST+4*w+1}")
    p(f"v_rcp_f32 v{T+4}, v{T+4}")
    for w in range(4):
        p(f"v_mul_f32 v{ST+4*w+1}, v{ST+4*w+1}, v{T+4}")
    for G in range(4):
        p(f"s_sub_u32 s8, s{S_W}, {G}")
        p("s_and_b32 s8, s8, 3")
        p(f"v_mov_b32 v{T+4+G}, v{ST+1}")
        for w in range(1, 4):
            p(f"s_cmp_eq_u32 s8, {w}")
            p("s_cselect_b64 vcc, -1, 0")
            p(f"v_cndmask_b32 v{T+4+G}, v{T+4+G}, v{ST+4*w+1}, vcc")
    for ct in range(6):
        for r in range(4):
            p(f"v_mul_f32 v{O+16*ct+r}, v{O+16*ct+r}, v{T+4}")
    for G in range(1, 4):
        for ct in range(6):
            for r in range(4):
                p(f"v_fmac_f32 v{O+16*ct+r}, v{rd(G,ct)+r}, v{T+4+G}")
    p(f"v_and_b32 v{T}, 31, v{L}")
    emit_fsw(p, T + 1, T, T + 2)
    p(f"v_mul_u32_u24 v{T}, 384, v{T}")
    p(f"v_lshrrev_b32 v{T+2}, 5, v{L}")
    p(f"v_lshl_add_u32 v{T}, v{T+2}, 3, v{T}")
    p(f"v_add_u32 v{T}, {TILE}, v{T}")
    p(f"v_xor_b32 v{T+1}, s{S_W}, v{T+1}")
    p(f"v_lshl_add_u32 v{T+2}, v{T+1}, 4, v{T}")
    p(f"v_xor_b32 v{T+1}, 4, v{T+1}")
    p(f"v_lshl_add_u32 v{T+3}, v{T+1}, 4, v{T}")
    for ct in range(6):
        a = O + 16 * ct
        p(f"v_cvt_pk_bf16_f32 v{a}, v{a}, v{a+1}")
        p(f"v_cvt_pk_bf16_f32 v{a+1}, v{a+2}, v{a+3}")
        p(f"ds_write_b64 v{T+2+(ct&1)}, {vr(a,2)} offset:{(ct>>1)*128}")
    p("s_barrier ; BAR_8")
    p("s_endpgm")

    p.label("k2_loader")
    S_LW = 7
    p(f"s_sub_u32 s{S_LW}, s{S_W}, 4")
    VOFF = 2
    p(f"v_lshlrev_b32 v{VOFF}, 4, v{L}")
    MS = 4
    p(f"v_and_b32 v8, 15, v{L}")
    emit_pi_token(p, 9, 8, 10)
    p(f"s_lshl_b32 s8, s{S_T}, 10")
    p(f"s_lshl_b32 s9, s{S_I}, 5")
    p("s_add_u32 s8, s8, s9")
    p("s_mov_b32 s14, s8")
    p("s_lshl_b32 s8, s8, 3")
    p(f"s_add_u32 s8, s8, {WS_MS}")
    p("v_lshlrev_b32 v10, 3, v9")
    p(f"buffer_load_dwordx2 {vr(MS,2)}, v10, {sr(SRD_WS,4)}, s8 offen")
    p(f"buffer_load_dwordx2 {vr(MS+2,2)}, v10, {sr(SRD_WS,4)}, s8 offen offset:128")
    p(f"s_mul_i32 s10, s{S_T}, 393216")
    p(f"s_add_u32 s11, s{S_I}, s{S_LW}")
    p(f"s_mul_i32 s12, s{S_LW}, {SLOT}")

    def issue_block(r):
        p("s_and_b32 s11, s11, 31")
        p(f"s_mul_i32 s13, s11, {SLOT}")
        p("s_add_u32 s13, s13, s10")
        for k in range(3):
            p(f"s_add_u32 m0, s12, {(r%3)*49152 + k*4096}")
            for q in range(4):
                p(f"buffer_load_dwordx4 v{VOFF}, {sr(SRD_WS,4)}, s13 offen offset:{q*1024} lds")
            if k < 2:
                p("s_add_u32 s13, s13, 4096")
        p("s_add_u32 s11, s11, 4")
    for r in range(3):
        issue_block(r)
    RA = 12
    tile_wr_addrs(p, RA, S_LW, L, 8, 9, 10, 11, 0, ) if False else None
    p(f"s_mov_b32 s40, s{S_LW}")
    tile_wr_addrs(p, RA, 40, L, 8, 9, 10, 11, 0)
    BA2 = 16
    b16_addrs(p, BA2, L, 8, 9, 10, 11, TILE)
    p("s_waitcnt vmcnt(24)")
    p("s_barrier ; BAR_A")
    RES = 20
    for jj in range(3):
        for tt in range(2):
            p(f"ds_read_b64 {vr(RES+4*jj+2*tt,2)}, v{RA+jj} offset:{tt*6144}")
    p("s_barrier ; BAR_B")
    WV = 64
    for r in range(8):
        if r < 5:
            p("s_waitcnt vmcnt(12)")
        elif r == 5:
            p("s_waitcnt vmcnt(30)")
        elif r == 6:
            p("s_waitcnt vmcnt(18)")
        p(f"s_barrier ; BAR_{r}")
        if r + 3 < 8:
            issue_block(r + 3)
        if r == 4:
            p(f"s_mul_i32 s8, s{S_LW}, 18432")
            p(f"s_add_u32 s8, s8, {WS_WVO}")
            for n in range(18):
                p(f"buffer_load_dwordx4 {vr(WV+4*n,4)}, v{VOFF}, {sr(SRD_WS,4)}, s8 offen offset:{(n%4)*1024}")
                if n % 4 == 3:
                    p("s_add_u32 s8, s8, 4096")
    XR = 32
    for jj in range(3):
        for tt in range(2):
            a = XR + 8 * jj + 4 * tt
            h = RES + 4 * jj + 2 * tt
            p(f"v_lshlrev_b32 v{a}, 16, v{h}")
            p(f"v_and_b32 v{a+1}, 0xffff0000, v{h}")
            p(f"v_lshlrev_b32 v{a+2}, 16, v{h+1}")
            p(f"v_and_b32 v{a+3}, 0xffff0000, v{h+1}")
            for r in range(4):
                p(f"v_fma_f32 v{a+r}, v{a+r}, v{MS+2*tt+1}, v{MS+2*tt}")
    p(f"v_and_b32 v8, 15, v{L}")
    emit_pi_token(p, 9, 8, 10)
    p(f"v_bfe_u32 v10, v{L}, 4, 1")
    p("v_lshl_add_u32 v9, v10, 4, v9")
    p("v_mul_u32_u24 v9, 384, v9")
    p(f"v_lshrrev_b32 v10, 5, v{L}")
    p("v_lshl_add_u32 v9, v10, 4, v9")
    p("s_mul_i32 s8, s14, 384")
    p(f"s_mul_i32 s9, s{S_LW}, 96")
    p("s_add_u32 s8, s8, s9")
    p("s_barrier ; BAR_8")
    BF = 136
    for tt in range(2):
        for m in range(6):
            p(f"ds_read_b128 {vr(BF+24*tt+4*m,4)}, v{BA2+(m&1)} offset:{tt*6144+(m>>1)*128}")
    for tt in range(2):
        for m in range(6):
            for jj in range(3):
                a = XR + 8 * jj + 4 * tt
                p(f"v_mfma_f32_16x16x32_bf16 {vr(a,4)}, {vr(WV+4*(jj*6+m),4)}, {vr(BF+24*tt+4*m,4)}, {vr(a,4)}")
    for jj in range(3):
        a = XR + 8 * jj
        d = 192 + 4 * jj
        p(f"v_cvt_pk_bf16_f32 v{d}, v{a}, v{a+1}")
        p(f"v_cvt_pk_bf16_f32 v{d+1}, v{a+2}, v{a+3}")
        p(f"v_cvt_pk_bf16_f32 v{d+2}, v{a+4}, v{a+5}")
        p(f"v_cvt_pk_bf16_f32 v{d+3}, v{a+6}, v{a+7}")
        p(f"v_permlane16_swap_b32 v{d}, v{d+2}")
        p(f"v_permlane16_swap_b32 v{d+1}, v{d+3}")
        p(f"buffer_store_dwordx4 {vr(d,4)}, v9, {sr(SRD_OUT,4)}, s8 offen offset:{jj*32}")
    p.label("k2_exit")
    p("s_endpgm")
    return name


def S_W_TMP(p):
    p(f"s_mov_b32 s40, s{S_W}")
    return 40
```

```python
import sys, os
sys.path.insert(0, os.path.dirname(os.path.abspath(__file__)))
from common import *
import fold

HEADER = open("standalone__video_timesformer__vision.s.ref").read().split("; Override launch")[0]


def build(kernels):
    launches, bodies, descs = [], [], []
    for gen, grid, block, lds, vgpr in kernels:
        p = Prog()
        name = gen(p)
        bodies.append(p.finalize())
        launches.append(f"; @launch kernel={name} grid=({grid},1,1) block=({block},1,1) lds={lds}")
        descs.append(KDESC.format(name=name, vgpr=vgpr, accum=vgpr))
    s = HEADER + "\n".join(launches) + "\n"
    s += '.amdgcn_target "amdgcn-amd-amdhsa--gfx950"\n.text\n'
    s += "\n".join(bodies)
    s += "\n".join(descs)
    return s


def main():
    which = sys.argv[1] if len(sys.argv) > 1 else "all"
    out = sys.argv[2] if len(sys.argv) > 2 else "standalone__video_timesformer__vision.s"
    ks = []
    if "0" in which or which == "all":
        ks.append((fold.gen_k0, 36, 256, 0, 256))
    if "1" in which or which == "all":
        import k1
        ks.append((k1.gen_k1, 256, 512, 163840, 256))
    if "2" in which or which == "all":
        import k2
        ks.append((k2.gen_k2, 256, 512, 163840, 256))
    open(out, "w").write(build(ks))


main()
```

```python
import sys, os
sys.path.insert(0, os.path.dirname(os.path.abspath(__file__)))
from common import *
import fold

HEADER = open("standalone__video_timesformer__vision.s.ref").read().split("; Override launch")[0]


def build(kernels):
    launches, bodies, descs = [], [], []
    for gen, grid, block, lds, vgpr in kernels:
        p = Prog()
        name = gen(p)
        bodies.append(p.finalize())
        launches.append(f"; @launch kernel={name} grid=({grid},1,1) block=({block},1,1) lds={lds}")
        descs.append(KDESC.format(name=name, vgpr=vgpr, accum=vgpr))
    s = HEADER + "\n".join(launches) + "\n"
    s += '.amdgcn_target "amdgcn-amd-amdhsa--gfx950"\n.text\n'
    s += "\n".join(bodies)
    s += "\n".join(descs)
    return s


def gen_noop(i):
    def g(p):
        name = f"noop{i}_kernel"
        p(f".globl {name}\n.p2align 8\n.type {name},@function")
        p.label(name)
        p("s_endpgm")
        return name
    return g


def main():
    which = sys.argv[1] if len(sys.argv) > 1 else "all"
    out = sys.argv[2] if len(sys.argv) > 2 else "standalone__video_timesformer__vision.s"
    ks = []
    nn = 0
    for ch in which:
        if ch == "0":
            ks.append((fold.gen_k0, 36, 256, 0, 256))
        elif ch == "1":
            import k1
            ks.append((k1.gen_k1, 256, 512, 163840, 256))
        elif ch == "2":
            import k2
            ks.append((k2.gen_k2, 256, 512, 163840, 256))
        elif ch == "n":
            ks.append((gen_noop(nn), 256, 512, 0, 8))
            nn += 1
    open(out, "w").write(build(ks))


main()
```

```python
import math
from asmlib import Prog

WS_H2 = 0x000000
WS_MS = 0x300000
WS_WQK = 0x310000
WS_WVO = 0x322000
WS_DBG = 0x400000
WS_BYTES = 268435456
SCALE_LOG2E = (192 ** -0.5) * math.log2(math.e)

KDESC = """.section .rodata,"a"
.p2align 6
.amdhsa_kernel {name}
  .amdhsa_next_free_vgpr {vgpr}
  .amdhsa_next_free_sgpr 102
  .amdhsa_accum_offset {accum}
  .amdhsa_group_segment_fixed_size 0
  .amdhsa_kernarg_size 64
  .amdhsa_user_sgpr_count 2
  .amdhsa_user_sgpr_kernarg_segment_ptr 1
  .amdhsa_system_sgpr_workgroup_id_x 1
.end_amdhsa_kernel
"""


def f2u(x):
    import struct
    return struct.unpack("<I", struct.pack("<f", x))[0]


def hexf(x):
    return "0x%08x" % f2u(x)


def vr(base, n=1):
    return "v%d" % base if n == 1 else "v[%d:%d]" % (base, base + n - 1)


def sr(base, n=1):
    return "s%d" % base if n == 1 else "s[%d:%d]" % (base, base + n - 1)


def make_srd(p, dst, ptr, nbytes):
    p(f"s_mov_b32 s{dst}, s{ptr}")
    p(f"s_mov_b32 s{dst+1}, s{ptr+1}")
    p(f"s_mov_b32 s{dst+2}, {nbytes}")
    p(f"s_mov_b32 s{dst+3}, 0x00020000")


import os
PROF = os.environ.get("PROF", "") != ""
WS_PROF = 0x600000


def stamp(p, i, real=False):
    if PROF:
        p(f"{'s_memrealtime' if real else 's_memtime'} s[{64+2*i}:{65+2*i}]")


def stamps_out(p, kidx, srd, s_wave, lane, tmp=250):
    if not PROF:
        return
    stamp(p, 14)
    stamp(p, 15, True)
    p("s_mov_b64 exec, -1")
    p(f"v_mov_b32 v{tmp}, 0")
    for i in range(16):
        p(f"v_writelane_b32 v{tmp}, s{64+2*i}, {i}")
    p(f"s_lshl_b32 s96, s2, 3")
    p(f"s_add_u32 s96, s96, s{s_wave}")
    p(f"s_lshl_b32 s96, s96, 6")
    p(f"s_add_u32 s96, s96, {WS_PROF + kidx * 0x40000}")
    p(f"v_lshlrev_b32 v{tmp+1}, 2, v{lane}")
    p("s_mov_b64 exec, 0xffff")
    p(f"buffer_store_dword v{tmp}, v{tmp+1}, {sr(srd,4)}, s96 offen")


HT = os.environ.get("HT", "") != ""


def ht_start(p):
    if HT:
        p("s_memrealtime s[98:99]")


def ht_end(p, kidx, lane, slot, tmp=252):
    if not HT:
        return
    p("s_memrealtime s[100:101]")
    p(f"s_sub_u32 s92, s28, {512*kidx}")
    p("s_subb_u32 s93, s29, 0")
    p("s_mov_b32 s94, 256")
    p("s_mov_b32 s95, 0x00020000")
    p("s_mov_b64 exec, 1")
    p("s_not_b32 s98, s98")
    p(f"v_mov_b32 v{tmp}, s98")
    p(f"v_mov_b32 v{tmp+1}, s100")
    p(f"v_mov_b32 v{tmp+2}, 0")
    p(f"buffer_atomic_umax v{tmp}, v{tmp+2}, s[92:95], 0 offen offset:{8*slot}")
    p(f"buffer_atomic_umax v{tmp+1}, v{tmp+2}, s[92:95], 0 offen offset:{8*slot+4}")
```

```python
from common import *
import fold

CH = 36864
TILE = 147456
SP = 159744
YSTR = 784

L = 1
XL = 4
XF = 16
D = 40
HO = 64
QA = 112
KA_ = 136
VA_ = 160
WF = 184
AD = 220
T = 232

S_W = 3
S_N0 = 4
SRD_X = 32
SRD_WQ = 36
SRD_WO = 40
SRD_WS = 44
SRD_WQS = 48
SRD_WOS = 52


def dpp_reduce8(p, v):
    p(f"v_add_f32_dpp v{v}, v{v}, v{v} quad_perm:[1,0,3,2] row_mask:0xf bank_mask:0xf")
    p(f"v_add_f32_dpp v{v}, v{v}, v{v} quad_perm:[2,3,0,1] row_mask:0xf bank_mask:0xf")
    p(f"v_add_f32_dpp v{v}, v{v}, v{v} row_half_mirror row_mask:0xf bank_mask:0xf")


def layernorm(p, X, Dd, t):
    p(f"v_pk_add_f32 {vr(t,2)}, {vr(X,2)}, {vr(X+2,2)}")
    p(f"v_pk_add_f32 {vr(t+2,2)}, {vr(X+4,2)}, {vr(X+6,2)}")
    for i in range(8, 24, 4):
        p(f"v_pk_add_f32 {vr(t,2)}, {vr(t,2)}, {vr(X+i,2)}")
        p(f"v_pk_add_f32 {vr(t+2,2)}, {vr(t+2,2)}, {vr(X+i+2,2)}")
    p(f"v_pk_add_f32 {vr(t,2)}, {vr(t,2)}, {vr(t+2,2)}")
    p(f"v_add_f32 v{t}, v{t}, v{t+1}")
    dpp_reduce8(p, t)
    p(f"v_mul_f32 v{t}, {hexf(1.0/192)}, v{t}")
    p(f"v_sub_f32 v{t+2}, 0, v{t}")
    p(f"v_sub_f32 v{t+3}, 0, v{t}")
    for i in range(0, 24, 2):
        p(f"v_pk_add_f32 {vr(Dd+i,2)}, {vr(X+i,2)}, {vr(t+2,2)}")
    p(f"v_pk_mul_f32 {vr(t+4,2)}, {vr(Dd,2)}, {vr(Dd,2)}")
    p(f"v_pk_mul_f32 {vr(t+6,2)}, {vr(Dd+2,2)}, {vr(Dd+2,2)}")
    for i in range(4, 24, 4):
        p(f"v_pk_fma_f32 {vr(t+4,2)}, {vr(Dd+i,2)}, {vr(Dd+i,2)}, {vr(t+4,2)}")
        p(f"v_pk_fma_f32 {vr(t+6,2)}, {vr(Dd+i+2,2)}, {vr(Dd+i+2,2)}, {vr(t+6,2)}")
    p(f"v_pk_add_f32 {vr(t+4,2)}, {vr(t+4,2)}, {vr(t+6,2)}")
    p(f"v_add_f32 v{t+4}, v{t+4}, v{t+5}")
    dpp_reduce8(p, t + 4)
    p(f"v_mov_b32 v{t+5}, {hexf(1e-5)}")
    p(f"v_fmac_f32 v{t+5}, {hexf(1.0/192)}, v{t+4}")
    p(f"v_rsq_f32 v{t+2}, v{t+5}")
    p(f"v_mov_b32 v{t+3}, v{t+2}")


import os
DBG = os.environ.get("K1_DBG", "")


def dump(p, stage, base, n):
    if DBG != stage:
        return
    lab = "k1_dbgskip_" + stage
    p("s_cmp_ge_u32 s2, 64")
    p(f"s_cbranch_scc1 {lab}")
    p(f"s_mul_i32 s60, s5, {32*256}")
    p(f"s_add_u32 s60, s60, {WS_DBG}")
    p(f"v_lshlrev_b32 v255, 2, v{L}")
    for i in range(n):
        p(f"buffer_store_dword v{base+i}, v255, {sr(SRD_WS,4)}, s60 offen")
        p("s_add_u32 s60, s60, 256")
    p.label(lab)


def gen_k1(p, with_fold=False):
    name = "k1_kernel"
    p(f".globl {name}\n.p2align 8\n.type {name},@function")
    p.label(name)
    p("s_cmp_ge_u32 s2, 256")
    p("s_cbranch_scc1 k1_exit")
    ht_start(p)
    stamp(p, 13, True)
    stamp(p, 0)
    p("s_load_dwordx16 s[16:31], s[0:1], 0")
    p(f"v_and_b32 v{L}, 63, v0")
    p("v_lshrrev_b32 v2, 6, v0")
    p(f"v_readfirstlane_b32 s{S_W}, v2")
    p(f"s_lshl_b32 s{S_N0}, s2, 2")
    make_srd(p, SRD_X, 16, 8 * 1024 * 192 * 2)
    make_srd(p, SRD_WQ, 18, 192 * 576 * 2)
    make_srd(p, SRD_WO, 20, 192 * 192 * 2)
    make_srd(p, SRD_WS, 30, WS_BYTES)
    p(f"s_cmp_ge_u32 s{S_W}, 4")
    p("s_cbranch_scc1 k1_loader")

    p(f"v_lshrrev_b32 v2, 3, v{L}")
    p(f"v_and_b32 v3, 7, v{L}")
    p(f"v_mul_u32_u24 v{T}, 393216, v2")
    p(f"v_lshl_add_u32 v{T}, v3, 4, v{T}")
    p(f"s_add_u32 s5, s{S_N0}, s{S_W}")
    p("s_mul_i32 s6, s5, 384")
    for a in range(3):
        p(f"buffer_load_dwordx4 {vr(XL+4*a,4)}, v{T}, {sr(SRD_X,4)}, s6 offen offset:{a*128}")
    p(f"v_lshrrev_b32 v{T+1}, 4, v{L}")
    p(f"v_bfe_u32 v{T+2}, v{L}, 2, 2")
    p(f"v_lshl_add_u32 v{T+2}, v{T+1}, 3, v{T+2}")
    p(f"v_mul_u32_u24 v{T+2}, 384, v{T+2}")
    p(f"v_and_b32 v{T+3}, 1, v{L}")
    p(f"v_lshl_add_u32 v{T+2}, v{T+3}, 3, v{T+2}")
    p(f"v_bfe_u32 v{T+3}, v{L}, 3, 1")
    p(f"v_bfe_u32 v{T+4}, v{L}, 4, 1")
    p(f"v_lshlrev_b32 v{T+3}, 2, v{T+3}")
    p(f"v_lshl_or_b32 v{T+3}, v{T+4}, 1, v{T+3}")
    p(f"v_bfe_u32 v{T+4}, v{L}, 1, 1")
    p(f"s_mul_i32 s7, s{S_W}, 6")
    p(f"v_add_u32 v{T+4}, s7, v{T+4}")
    for jj in range(3):
        p(f"v_add_u32 v{T+5}, {2*jj}, v{T+4}")
        p(f"v_xor_b32 v{T+5}, v{T+5}, v{T+3}")
        p(f"v_lshl_add_u32 v{AD+jj}, v{T+5}, 4, v{T+2}")
        p(f"v_add_u32 v{AD+3+jj}, {2*CH}, v{AD+jj}")
    TR = AD + 6
    p(f"v_and_b32 v{T+2}, 15, v{L}")
    p(f"v_bfe_u32 v{T+3}, v{L}, 1, 3")
    p(f"v_xor_b32 v{T+3}, v{T+3}, v{T+1}")
    p(f"v_mul_u32_u24 v{T+2}, 384, v{T+2}")
    p(f"v_add_u32 v{T+2}, {TILE}, v{T+2}")
    p(f"v_lshl_add_u32 v{TR}, v{T+3}, 4, v{T+2}")
    p(f"v_xor_b32 v{T+3}, 4, v{T+3}")
    p(f"v_lshl_add_u32 v{TR+1}, v{T+3}, 4, v{T+2}")
    OW = AD + 8
    p(f"v_bfe_u32 v{T+3}, v{L}, 1, 3")
    p(f"v_bfe_u32 v{T+4}, v{L}, 4, 1")
    p(f"v_lshl_add_u32 v{T+2}, v{T+4}, 3, v{T+2}")
    p(f"v_lshrrev_b32 v{T+4}, 5, v{L}")
    p(f"v_add_u32 v{T+4}, s7, v{T+4}")
    for jj in range(3):
        p(f"v_add_u32 v{T+5}, {2*jj}, v{T+4}")
        p(f"v_xor_b32 v{T+5}, v{T+5}, v{T+3}")
        p(f"v_lshl_add_u32 v{OW+jj}, v{T+5}, 4, v{T+2}")
    HW = AD + 11
    p(f"s_lshl_b32 s8, s{S_W}, 3")
    p(f"v_add_u32 v{T+2}, s8, v2")
    p(f"v_bfe_u32 v{T+3}, v{T+2}, 1, 3")
    p(f"v_xor_b32 v{T+3}, v{T+3}, v3")
    p(f"v_mul_u32_u24 v{T+4}, 384, v{T+2}")
    p(f"v_lshl_add_u32 v{HW}, v{T+3}, 4, v{T+4}")
    p(f"v_add_u32 v{HW}, {TILE}, v{HW}")
    YR = 2
    p(f"v_mul_u32_u24 v{T+4}, {YSTR}, v{T+2}")
    p(f"v_lshl_add_u32 v{YR}, v3, 5, v{T+4}")
    for i in range(12):
        p(f"v_lshlrev_b32 v{XF+2*i}, 16, v{XL+i}")
        p(f"v_and_b32 v{XF+2*i+1}, 0xffff0000, v{XL+i}")
    layernorm(p, XF, D, T)
    for i in range(0, 24, 2):
        p(f"v_pk_mul_f32 {vr(D+i,2)}, {vr(D+i,2)}, {vr(T+2,2)}")
    for i in range(12):
        p(f"v_cvt_pk_bf16_f32 v{XL+i}, v{D+2*i}, v{D+2*i+1}")
    for a in range(3):
        p(f"ds_write_b128 v{HW}, {vr(XL+4*a,4)} offset:{a*128}")
    dump(p, "h", XL, 12)

    def read_operand():
        for tt in range(2):
            for ks in range(6):
                p(f"ds_read_b128 {vr(HO+24*tt+4*ks,4)}, v{TR+(ks&1)} offset:{tt*6144+(ks>>1)*128}")

    def wfrag_reads(chunk):
        slot = chunk % 4
        base = AD if slot < 2 else AD + 3
        imm0 = (slot & 1) * CH
        for ks in range(3):
            for jj in range(3):
                f = WF + 4 * (ks * 3 + jj)
                for h in range(2):
                    p(f"ds_read_b64_tr_b16 {vr(f+2*h,2)}, v{base+jj} offset:{imm0+ks*12288+h*1536}")

    def gemm_chunk(chunk, accbase, w_is_a):
        half = chunk & 1
        wfrag_reads(chunk)
        for ks in range(3):
            for jj in range(3):
                f = WF + 4 * (ks * 3 + jj)
                for tt in range(2):
                    a = accbase + 8 * jj + 4 * tt
                    c = "0" if (half == 0 and ks == 0) else vr(a, 4)
                    h = vr(HO + 24 * tt + 4 * (3 * half + ks), 4)
                    if w_is_a:
                        p(f"v_mfma_f32_16x16x32_bf16 {vr(a,4)}, {vr(f,4)}, {h}, {c}")
                    else:
                        p(f"v_mfma_f32_16x16x32_bf16 {vr(a,4)}, {h}, {vr(f,4)}, {c}")

    def pack(accbase, dst):
        for jj in range(3):
            for tt in range(2):
                a = accbase + 8 * jj + 4 * tt
                d = dst + 4 * jj + 2 * tt
                p(f"v_cvt_pk_bf16_f32 v{d}, v{a}, v{a+1}")
                p(f"v_cvt_pk_bf16_f32 v{d+1}, v{a+2}, v{a+3}")

    p("s_barrier ; B0")
    stamp(p, 1)
    read_operand()
    gemm_chunk(0, QA, True)
    p("s_barrier ; B1")
    stamp(p, 2)
    gemm_chunk(1, QA, True)
    p("s_barrier ; B2")
    stamp(p, 3)
    gemm_chunk(2, KA_, True)
    p("s_barrier ; B3")
    stamp(p, 4)
    gemm_chunk(3, KA_, True)
    QP0, KP0 = D, D + 12
    for tt in range(2):
        for jj in range(3):
            a = QA + 8 * jj + 4 * tt
            d = QP0 + 6 * tt + 2 * jj
            p(f"v_cvt_pk_bf16_f32 v{d}, v{a}, v{a+1}")
            p(f"v_cvt_pk_bf16_f32 v{d+1}, v{a+2}, v{a+3}")
            a = KA_ + 8 * jj + 4 * tt
            d = KP0 + 6 * tt + 2 * jj
            p(f"v_cvt_pk_bf16_f32 v{d}, v{a}, v{a+1}")
            p(f"v_cvt_pk_bf16_f32 v{d+1}, v{a+2}, v{a+3}")
    dump(p, "qk", D, 24)
    SA = QA
    for tt in range(2):
        p(f"v_mfma_f32_16x16x32_bf16 {vr(SA+4*tt,4)}, {vr(KP0+6*tt,4)}, {vr(QP0+6*tt,4)}, 0")
    for tt in range(2):
        p(f"v_mfma_f32_16x16x16_bf16 {vr(SA+4*tt,4)}, {vr(KP0+6*tt+4,2)}, {vr(QP0+6*tt+4,2)}, {vr(SA+4*tt,4)}")
    SPW = T + 8
    SPR = T + 9
    p(f"v_lshrrev_b32 v{T}, 4, v{L}")
    p(f"v_and_b32 v{T+1}, 7, v{L}")
    p(f"v_lshl_add_u32 v{T}, v{T}, 3, v{T+1}")
    p(f"v_lshlrev_b32 v{T}, 4, v{T}")
    p(f"v_add_u32 v{SPR}, {SP}, v{T}")
    p(f"s_lshl_b32 s8, s{S_W}, 10")
    p(f"v_add_u32 v{SPW}, s8, v{SPR}")
    p("s_mov_b32 s10, 0x00FF00FF")
    p("s_mov_b32 s11, 0xFF00FF00")
    p("s_mov_b64 exec, s[10:11]")
    for tt in range(2):
        p(f"ds_write_b128 v{SPW}, {vr(SA+4*tt,4)} offset:{tt*512}")
    p("s_mov_b64 exec, -1")
    p("s_barrier ; B4")
    stamp(p, 5)
    SR = QA + 8
    for tt in range(2):
        for w in range(4):
            p(f"ds_read_b128 {vr(SR+16*tt+4*w,4)}, v{SPR} offset:{w*1024+tt*512}")
    gemm_chunk(4, VA_, False)
    PP = D
    c1 = (192 ** -0.5) * math.log2(math.e)
    for tt in range(2):
        s = SR + 16 * tt
        for r in range(4):
            p(f"v_add_f32 v{s+r}, v{s+r}, v{s+4+r}")
            p(f"v_add_f32 v{s+8+r}, v{s+8+r}, v{s+12+r}")
            p(f"v_add_f32 v{s+r}, v{s+r}, v{s+8+r}")
            p(f"v_mul_f32 v{s+r}, {hexf(c1)}, v{s+r}")
        p(f"v_max3_f32 v{T}, v{s}, v{s+1}, v{s+2}")
        p(f"v_max_f32 v{T}, v{T}, v{s+3}")
        p(f"v_mov_b32 v{T+1}, v{T}")
        p(f"v_permlane16_swap_b32 v{T}, v{T+1}")
        p(f"v_max_f32 v{T}, v{T}, v{T+1}")
        for r in range(4):
            p(f"v_sub_f32 v{s+r}, v{s+r}, v{T}")
            p(f"v_exp_f32 v{s+r}, v{s+r}")
        p(f"v_add_f32 v{T}, v{s}, v{s+1}")
        p(f"v_add_f32 v{T+1}, v{s+2}, v{s+3}")
        p(f"v_add_f32 v{T}, v{T}, v{T+1}")
        p(f"v_mov_b32 v{T+1}, v{T}")
        p(f"v_permlane16_swap_b32 v{T}, v{T+1}")
        p(f"v_add_f32 v{T}, v{T}, v{T+1}")
        p(f"v_rcp_f32 v{T}, v{T}")
        for r in range(4):
            p(f"v_mul_f32 v{s+r}, v{s+r}, v{T}")
        p(f"v_cvt_pk_bf16_f32 v{PP+2*tt}, v{s}, v{s+1}")
        p(f"v_cvt_pk_bf16_f32 v{PP+2*tt+1}, v{s+2}, v{s+3}")
        p("s_mov_b64 vcc, s[10:11]")
        p(f"v_cndmask_b32 v{PP+2*tt}, 0, v{PP+2*tt}, vcc")
        p(f"v_cndmask_b32 v{PP+2*tt+1}, 0, v{PP+2*tt+1}, vcc")
    dump(p, "p", PP, 4)
    p("s_barrier ; B5")
    stamp(p, 6)
    gemm_chunk(5, VA_, False)
    VP = D + 4
    pack(VA_, VP)
    dump(p, "v", VP, 12)
    OA = QA
    for jj in range(3):
        for tt in range(2):
            p(f"v_mfma_f32_16x16x16_bf16 {vr(OA+8*jj+4*tt,4)}, {vr(VP+4*jj+2*tt,2)}, {vr(PP+2*tt,2)}, 0")
    pack(OA, VP)
    dump(p, "o", VP, 12)
    for jj in range(3):
        for tt in range(2):
            p(f"ds_write_b64 v{OW+jj}, {vr(VP+4*jj+2*tt,2)} offset:{tt*6144}")
    p("s_barrier ; B6")
    stamp(p, 7)
    read_operand()
    YA = VA_
    gemm_chunk(6, YA, True)
    p("s_barrier ; B7")
    stamp(p, 8)
    gemm_chunk(7, YA, True)
    dump(p, "y", YA, 24)
    p(f"v_and_b32 v{T}, 15, v{L}")
    p(f"v_mul_u32_u24 v{T}, {YSTR}, v{T}")
    p(f"v_lshrrev_b32 v{T+1}, 4, v{L}")
    p(f"v_lshl_add_u32 v{T}, v{T+1}, 4, v{T}")
    p(f"s_mul_i32 s8, s{S_W}, 192")
    p(f"v_add_u32 v{T}, s8, v{T}")
    for jj in range(3):
        for tt in range(2):
            p(f"ds_write_b128 v{T}, {vr(YA+8*jj+4*tt,4)} offset:{tt*16*YSTR+jj*64}")
    p("s_barrier ; B8")
    stamp(p, 9)
    for a in range(3):
        for h in range(2):
            p(f"ds_read_b128 {vr(D+8*a+4*h,4)}, v{YR} offset:{a*256+h*16}")
    for i in range(0, 24, 2):
        p(f"v_pk_add_f32 {vr(XF+i,2)}, {vr(XF+i,2)}, {vr(D+i,2)}")
    layernorm(p, XF, D, T)
    for i in range(0, 24, 2):
        p(f"v_pk_mul_f32 {vr(D+i,2)}, {vr(D+i,2)}, {vr(T+2,2)}")
    for i in range(12):
        p(f"v_cvt_pk_bf16_f32 v{XL+i}, v{D+2*i}, v{D+2*i+1}")
    p("s_bfe_u32 s8, s5, 0x10001")
    p("s_lshl_b32 s8, s8, 2")
    p("s_bfe_u32 s9, s5, 0x10003")
    p("s_lshl_b32 s9, s9, 1")
    p("s_or_b32 s8, s8, s9")
    p("s_bfe_u32 s9, s5, 0x10002")
    p("s_or_b32 s8, s8, s9")
    p(f"v_lshrrev_b32 v{T+6}, 3, v{L}")
    p(f"v_mul_u32_u24 v{T+7}, 393216, v{T+6}")
    p(f"v_xor_b32 v{T+8}, s8, v3")
    p(f"v_lshl_add_u32 v{T+7}, v{T+8}, 4, v{T+7}")
    for a in range(3):
        p(f"buffer_store_dwordx4 {vr(XL+4*a,4)}, v{T+7}, {sr(SRD_WS,4)}, s6 offen offset:{a*128}")
    p(f"v_mul_f32 v{T+1}, v{T+5}, v{T+2}")
    p(f"v_lshlrev_b32 v{T+7}, 13, v{T+6}")
    p("s_lshl_b32 s9, s5, 3")
    p(f"s_add_u32 s9, s9, {WS_MS}")
    p("s_mov_b32 s10, 0x01010101")
    p("s_mov_b32 s11, 0x01010101")
    p("s_mov_b64 exec, s[10:11]")
    p(f"buffer_store_dwordx2 {vr(T,2)}, v{T+7}, {sr(SRD_WS,4)}, s9 offen")
    stamps_out(p, 1, SRD_WS, S_W, L)
    ht_end(p, 1, L, 1)
    p("s_endpgm")

    p.label("k1_loader")
    S_LW = 7
    p(f"s_sub_u32 s{S_LW}, s{S_W}, 4")
    VQ = 4
    VO = 8
    for u in range(3):
        p(f"s_lshl_b32 s8, s{S_LW}, 6")
        p(f"s_add_u32 s8, s8, {256*u}")
        p(f"v_add_u32 v12, s8, v{L}")
        p("v_mul_u32_u24 v13, 2731, v12")
        p("v_lshrrev_b32 v13, 16, v13")
        p("v_mul_u32_u24 v14, 24, v13")
        p("v_sub_u32 v14, v12, v14")
        p("v_and_b32 v15, 2, v13")
        p("v_lshlrev_b32 v15, 1, v15")
        p("v_bfe_u32 v16, v13, 3, 1")
        p("v_lshl_or_b32 v15, v16, 1, v15")
        p("v_xor_b32 v14, v14, v15")
        p("v_lshlrev_b32 v14, 4, v14")
        p(f"v_mul_u32_u24 v15, 1152, v13")
        p(f"v_add_u32 v{VQ+u}, v15, v14")
        p(f"v_mul_u32_u24 v15, 384, v13")
        p(f"v_add_u32 v{VO+u}, v15, v14")
    p(f"s_lshl_b32 s12, s{S_LW}, 10")

    def issue_chunk(c):
        slot = c % 4
        half = c & 1
        for ks in range(3):
            if c < 6:
                soff = (96 * half + 32 * ks) * 1152 + (c >> 1) * 384
                srd, vo = SRD_WQ, VQ
            else:
                soff = (96 * half + 32 * ks) * 384
                srd, vo = SRD_WO, VO
            p(f"s_mov_b32 s13, {soff}")
            for u in range(3):
                p(f"s_add_u32 m0, s12, {slot*CH + ks*12288 + u*4096}")
                p(f"buffer_load_dwordx4 v{vo+u}, {sr(srd,4)}, s13 offen lds")
    for c in range(4):
        issue_chunk(c)
    waits = [27, 18, 18, 18, 18, 18, 9, 0]
    for b in range(8):
        p(f"s_waitcnt vmcnt({waits[b]})")
        stamp(p, b + 1)
        p(f"s_barrier ; B{b}")
        if 1 <= b <= 4:
            issue_chunk(b + 3)
    stamps_out(p, 1, SRD_WS, S_W, L)
    p.label("k1_exit")
    p("s_endpgm")
    return name
```

```python
from common import *

SLOT = 12288
TILE = 147456
STATS = 159744
THR = 16.0

V_LANE = 1
KA = 2
VA = 6
V_L = 10
V_M = 11
V_THR = 12
V_LC = 13
T14, T15 = 14, 15
O = 16
QP = 112
NEGM = 160
S = 176
P = 192
T = 200
KF = 208
VF = 224
X = 248

S_W = 3
S_T = 4
S_I = 5
S_R = 6
SRD_WS = 32
SRD_OUT = 36


def emit_pi_token(p, dst, lam, tmp):
    p(f"v_add_u32 v{dst}, 4, v{lam}")
    p(f"v_cmp_gt_u32 vcc, 4, v{lam}")
    p(f"v_cndmask_b32 v{dst}, v{dst}, v{lam}, vcc")
    p(f"v_subrev_u32 v{tmp}, 8, v{lam}")
    p(f"v_cmp_lt_u32 vcc, 11, v{lam}")
    p(f"v_cndmask_b32 v{dst}, v{dst}, v{tmp}, vcc")


def emit_fsw(p, dst, row, tmp):
    p(f"v_and_b32 v{dst}, 2, v{row}")
    p(f"v_lshlrev_b32 v{dst}, 1, v{dst}")
    p(f"v_bfe_u32 v{tmp}, v{row}, 3, 1")
    p(f"v_lshl_or_b32 v{dst}, v{tmp}, 1, v{dst}")
    p(f"v_bfe_u32 v{tmp}, v{row}, 2, 1")
    p(f"v_or_b32 v{dst}, v{dst}, v{tmp}")


def tile_wr_addrs(p, dst3, s_w4, lane, t0, t1, t2, t3, base):
    p(f"v_and_b32 v{t0}, 15, v{lane}")
    emit_pi_token(p, t1, t0, t2)
    emit_fsw(p, t2, t1, t3)
    p(f"v_mul_u32_u24 v{t1}, 384, v{t1}")
    p(f"v_bfe_u32 v{t3}, v{lane}, 4, 1")
    p(f"v_lshl_add_u32 v{t1}, v{t3}, 3, v{t1}")
    p(f"v_add_u32 v{t1}, {base}, v{t1}")
    p(f"v_lshrrev_b32 v{t0}, 5, v{lane}")
    p(f"s_mul_i32 s{s_w4+1}, s{s_w4}, 6")
    p(f"v_add_u32 v{t0}, s{s_w4+1}, v{t0}")
    for jj in range(3):
        p(f"v_add_u32 v{t3}, {2*jj}, v{t0}")
        p(f"v_xor_b32 v{t3}, v{t3}, v{t2}")
        p(f"v_lshl_add_u32 v{dst3+jj}, v{t3}, 4, v{t1}")


def b16_addrs(p, dst2, lane, t0, t1, t2, t3, base):
    p(f"v_and_b32 v{t0}, 15, v{lane}")
    emit_pi_token(p, t1, t0, t2)
    emit_fsw(p, t2, t1, t3)
    p(f"v_mul_u32_u24 v{t1}, 384, v{t1}")
    p(f"v_add_u32 v{t1}, {base}, v{t1}")
    p(f"v_lshrrev_b32 v{t0}, 4, v{lane}")
    p(f"v_xor_b32 v{t0}, v{t0}, v{t2}")
    p(f"v_lshl_add_u32 v{dst2}, v{t0}, 4, v{t1}")
    p(f"v_xor_b32 v{t0}, 4, v{t0}")
    p(f"v_lshl_add_u32 v{dst2+1}, v{t0}, 4, v{t1}")


def gen_k2(p, dbg=False):
    name = "k2_kernel"
    p(f".globl {name}\n.p2align 8\n.type {name},@function")
    p.label(name)
    p("s_cmp_ge_u32 s2, 256")
    p("s_cbranch_scc1 k2_exit")
    ht_start(p)
    stamp(p, 13, True)
    stamp(p, 0)
    p("s_load_dwordx16 s[16:31], s[0:1], 0")
    p(f"v_and_b32 v{V_LANE}, 63, v0")
    p("v_lshrrev_b32 v2, 6, v0")
    p(f"v_readfirstlane_b32 s{S_W}, v2")
    p(f"s_and_b32 s{S_T}, s2, 7")
    p(f"s_lshr_b32 s{S_I}, s2, 3")
    make_srd(p, SRD_WS, 30, WS_BYTES)
    make_srd(p, SRD_OUT, 26, 8 * 1024 * 192 * 2)
    p(f"s_cmp_ge_u32 s{S_W}, 4")
    p("s_cbranch_scc1 k2_loader")

    L = V_LANE
    def wq(n):
        return QP + 4 * n if n < 12 else VF + 4 * (n - 12)
    p(f"v_lshlrev_b32 v{T14}, 4, v{L}")
    p(f"s_mul_i32 s8, s{S_W}, 18432")
    p(f"s_add_u32 s8, s8, {WS_WQK}")
    for n in range(18):
        p(f"buffer_load_dwordx4 {vr(wq(n),4)}, v{T14}, {sr(SRD_WS,4)}, s8 offen offset:{(n%4)*1024}")
        if n % 4 == 3:
            p("s_add_u32 s8, s8, 4096")
    for i in range(96):
        p(f"v_mov_b32 v{O+i}, 0")
    p(f"v_and_b32 v{T}, 31, v{L}")
    emit_fsw(p, T + 1, T, T + 2)
    p(f"v_lshrrev_b32 v{T+2}, 5, v{L}")
    p(f"v_xor_b32 v{T+1}, v{T+1}, v{T+2}")
    p(f"v_mul_u32_u24 v{T}, 384, v{T}")
    for j in range(4):
        p(f"v_xor_b32 v{T+3}, {2*j}, v{T+1}")
        p(f"v_lshl_add_u32 v{KA+j}, v{T+3}, 4, v{T}")
    p(f"v_bfe_u32 v{T}, v{L}, 2, 2")
    p(f"v_lshl_add_u32 v{T}, v{T+2}, 2, v{T}")
    p(f"v_mul_u32_u24 v{T}, 384, v{T}")
    p(f"v_and_b32 v{T+3}, 1, v{L}")
    p(f"v_lshl_add_u32 v{T}, v{T+3}, 3, v{T}")
    p(f"v_bfe_u32 v{T+3}, v{L}, 4, 1")
    p(f"v_bfe_u32 v{T+4}, v{L}, 1, 1")
    p(f"v_lshl_add_u32 v{T+3}, v{T+3}, 1, v{T+4}")
    p(f"v_add_u32 v{T+3}, s{S_W}, v{T+3}")
    p(f"v_and_b32 v{T+3}, 3, v{T+3}")
    p(f"v_bfe_u32 v{T+4}, v{L}, 3, 1")
    p(f"v_lshl_or_b32 v{T+4}, v{T+4}, 2, v{T+2}")
    p(f"v_xor_b32 v{T+3}, v{T+3}, v{T+4}")
    for par in range(2):
        for half in range(2):
            p(f"v_xor_b32 v{T+4}, {4*par + 2*half}, v{T+3}")
            p(f"v_lshl_add_u32 v{VA+2*par+half}, v{T+4}, 4, v{T}")
            if half:
                p(f"v_add_u32 v{VA+2*par+half}, {8*384}, v{VA+2*par+half}")
    BA = X
    WA = X + 2
    b16_addrs(p, BA, L, T, T + 1, T + 2, T + 3, 0)
    tile_wr_addrs(p, WA, S_W_TMP(p), L, T, T + 1, T + 2, T + 3, TILE)
    p(f"v_mov_b32 v{V_L}, 0")
    p(f"v_mov_b32 v{V_M}, 0")
    p(f"v_mov_b32 v{V_THR}, 0xff800000")
    p(f"v_mov_b32 v{V_LC}, 0xff800000")
    stamp(p, 1)
    p("s_barrier ; BAR_A")
    stamp(p, 2)
    def acc(jj, tt):
        n = jj * 2 + tt
        return KF + 4 * n if n < 4 else T + 4 * (n - 4)
    for tt in range(2):
        for m in range(6):
            p(f"ds_read_b128 {vr(NEGM+4*m,4)}, v{BA+(m&1)} offset:{tt*6144+(m>>1)*128}")
        for m in range(6):
            for jj in range(3):
                c = "0" if m == 0 else vr(acc(jj, tt), 4)
                p(f"v_mfma_f32_16x16x32_bf16 {vr(acc(jj,tt),4)}, {vr(wq(jj*6+m),4)}, {vr(NEGM+4*m,4)}, {c}")
    for tt in range(2):
        for jj in range(3):
            a = acc(jj, tt)
            p(f"v_cvt_pk_bf16_f32 v{a}, v{a}, v{a+1}")
            p(f"v_cvt_pk_bf16_f32 v{a+1}, v{a+2}, v{a+3}")
            p(f"ds_write_b64 v{WA+jj}, {vr(a,2)} offset:{tt*6144}")
    stamp(p, 3)
    p("s_barrier ; BAR_B")
    stamp(p, 4)
    for j in range(4):
        p(f"v_add_u32 v{T+j}, {TILE}, v{KA+j}")
    for s in range(12):
        p(f"ds_read_b128 {vr(QP+4*s,4)}, v{T+(s&3)} offset:{(s>>2)*128}")
    for i in range(16):
        p(f"v_mov_b32 v{NEGM+i}, 0")
    p(f"s_mul_i32 s8, s{S_W}, {SLOT}")
    for j in range(4):
        p(f"v_add_u32 v{KA+j}, s8, v{KA+j}")
        p(f"v_add_u32 v{VA+j}, s8, v{VA+j}")
    p(f"s_mov_b32 s{S_R}, 0")
    p("s_mov_b32 s9, 0")
    stamp(p, 5)
    p.label("k2_loop")
    def kread(s):
        p(f"ds_read_b128 {vr(KF+4*(s&3),4)}, v{KA+(s&3)} offset:{(s>>2)*128}")
    for s in range(4):
        kread(s)
    for s in range(12):
        c = vr(NEGM, 16) if s == 0 else vr(S, 16)
        p(f"v_mfma_f32_32x32x16_bf16 {vr(S,16)}, {vr(KF+4*(s&3),4)}, {vr(QP+4*s,4)}, {c}")
        if s + 4 < 12:
            kread(s + 4)
    def vread(kap, ct, dst):
        for half in range(2):
            p(f"ds_read_b64_tr_b16 {vr(dst+2*half,2)}, v{VA+2*(ct&1)+half} offset:{kap*6144+(ct>>1)*128}")
    for ct in range(6):
        vread(0, ct, VF + 4 * ct)
    p(f"v_max3_f32 v{T}, v{S}, v{S+1}, v{S+2}")
    for i in range(3, 15, 2):
        p(f"v_max3_f32 v{T}, v{T}, v{S+i}, v{S+i+1}")
    p(f"v_max_f32 v{T}, v{T}, v{S+15}")
    p(f"v_cmp_gt_f32 vcc, v{T}, v{V_THR}")
    p("s_cbranch_vccnz k2_slow")
    p.label("k2_back")
    for i in range(16):
        p(f"v_exp_f32 v{S+i}, v{S+i}")
    for i in range(16):
        p(f"v_add_f32 v{V_L}, v{V_L}, v{S+i}")
    for i in range(8):
        p(f"v_cvt_pk_bf16_f32 v{P+i}, v{S+2*i}, v{S+2*i+1}")
    for ct in range(6):
        p(f"v_mfma_f32_32x32x16_bf16 {vr(O+16*ct,16)}, {vr(VF+4*ct,4)}, {vr(P,4)}, {vr(O+16*ct,16)}")
        vread(1, ct, VF + 4 * ct)
    for ct in range(6):
        p(f"v_mfma_f32_32x32x16_bf16 {vr(O+16*ct,16)}, {vr(VF+4*ct,4)}, {vr(P+4,4)}, {vr(O+16*ct,16)}")
    p(f"s_cmp_eq_u32 s{S_R}, 7")
    p("s_cbranch_scc1 k2_fin")
    p(f"s_add_u32 s{S_R}, s{S_R}, 1")
    p("s_add_u32 s9, s9, 1")
    p("s_cmp_eq_u32 s9, 3")
    p(f"s_mov_b32 s10, {-98304 & 0xffffffff}")
    p(f"s_cselect_b32 s10, s10, 49152")
    p("s_cselect_b32 s9, 0, s9")
    for j in range(4):
        p(f"v_add_u32 v{KA+j}, s10, v{KA+j}")
        p(f"v_add_u32 v{VA+j}, s10, v{VA+j}")
    p("s_barrier ; BAR_r")
    p("s_branch k2_loop")

    p.label("k2_slow")
    p(f"v_mov_b32 v{T+1}, v{T}")
    p(f"v_permlane32_swap_b32 v{T}, v{T+1}")
    p(f"v_max_f32 v{T}, v{T}, v{T+1}")
    p(f"v_max_f32 v{T}, v{T}, v{V_LC}")
    p(f"v_max_f32 v{T+1}, 0, v{T}")
    p(f"v_exp_f32 v{T+1}, -v{T+1}")
    p(f"v_add_f32 v{V_M}, v{V_M}, v{T}")
    for i in range(16):
        p(f"v_sub_f32 v{S+i}, v{S+i}, v{T}")
    for i in range(16):
        p(f"v_sub_f32 v{NEGM+i}, 0, v{V_M}")
    p(f"v_mul_f32 v{V_L}, v{V_L}, v{T+1}")
    for i in range(96):
        p(f"v_mul_f32 v{O+i}, v{O+i}, v{T+1}")
    p(f"v_mov_b32 v{V_THR}, {hexf(THR)}")
    p(f"v_mov_b32 v{V_LC}, 0")
    p("s_branch k2_back")

    p.label("k2_fin")
    stamp(p, 6)
    p(f"s_lshl_b32 s8, s{S_W}, 9")
    p(f"s_add_u32 s8, s8, {STATS}")
    p(f"v_lshlrev_b32 v{T}, 3, v{L}")
    p(f"v_add_u32 v{T}, s8, v{T}")
    p(f"ds_write_b64 v{T}, {vr(V_L,2)}")
    p(f"v_lshlrev_b32 v{T+1}, 4, v{L}")
    for G in range(1, 4):
        p(f"s_add_u32 s8, s{S_W}, {G}")
        p("s_and_b32 s8, s8, 3")
        p("s_mul_i32 s8, s8, 3")
        p(f"s_add_u32 s8, s8, {G-1}")
        p("s_mul_i32 s10, s8, 6144")
        p("s_cmp_ge_u32 s8, 8")
        p(f"s_cselect_b32 s11, {98304-8*6144}, 0")
        p("s_add_u32 s10, s10, s11")
        p(f"v_add_u32 v{T+2}, s10, v{T+1}")
        for ct in range(6):
            p(f"ds_write_b128 v{T+2}, {vr(O+16*ct+4*G,4)} offset:{ct*1024}")
    stamp(p, 7)
    p("s_barrier ; BAR_7")
    stamp(p, 8)
    p(f"v_and_b32 v{T}, 31, v{L}")
    p(f"v_lshlrev_b32 v{T}, 3, v{T}")
    p(f"v_add_u32 v{T}, {STATS}, v{T}")
    ST = KF
    for w in range(4):
        for hh in range(2):
            p(f"ds_read_b64 {vr(ST+4*w+2*hh,2)}, v{T} offset:{w*512+hh*256}")
    def rd(G, ct):
        n = (G - 1) * 6 + ct
        return QP + 4 * n if n < 12 else VF + 4 * (n - 12)
    for G in range(1, 4):
        p(f"s_mul_i32 s8, s{S_W}, 3")
        p(f"s_add_u32 s8, s8, {G-1}")
        p("s_mul_i32 s10, s8, 6144")
        p("s_cmp_ge_u32 s8, 8")
        p(f"s_cselect_b32 s11, {98304-8*6144}, 0")
        p("s_add_u32 s10, s10, s11")
        p(f"v_add_u32 v{T+2}, s10, v{T+1}")
        for ct in range(6):
            p(f"ds_read_b128 {vr(rd(G,ct),4)}, v{T+2} offset:{ct*1024}")
    p(f"v_max3_f32 v{T+3}, v{ST+1}, v{ST+5}, v{ST+9}")
    p(f"v_max_f32 v{T+3}, v{T+3}, v{ST+13}")
    for w in range(4):
        p(f"v_sub_f32 v{ST+4*w+1}, v{ST+4*w+1}, v{T+3}")
        p(f"v_exp_f32 v{ST+4*w+1}, v{ST+4*w+1}")
        p(f"v_add_f32 v{ST+4*w}, v{ST+4*w}, v{ST+4*w+2}")
    p(f"v_mul_f32 v{T+4}, v{ST}, v{ST+1}")
    for w in range(1, 4):
        p(f"v_fmac_f32 v{T+4}, v{ST+4*w}, v{ST+4*w+1}")
    p(f"v_rcp_f32 v{T+4}, v{T+4}")
    for w in range(4):
        p(f"v_mul_f32 v{ST+4*w+1}, v{ST+4*w+1}, v{T+4}")
    for G in range(4):
        p(f"s_sub_u32 s8, s{S_W}, {G}")
        p("s_and_b32 s8, s8, 3")
        p(f"v_mov_b32 v{T+4+G}, v{ST+1}")
        for w in range(1, 4):
            p(f"s_cmp_eq_u32 s8, {w}")
            p("s_cselect_b64 vcc, -1, 0")
            p(f"v_cndmask_b32 v{T+4+G}, v{T+4+G}, v{ST+4*w+1}, vcc")
    for ct in range(6):
        for r in range(4):
            p(f"v_mul_f32 v{O+16*ct+r}, v{O+16*ct+r}, v{T+4}")
    for G in range(1, 4):
        for ct in range(6):
            for r in range(4):
                p(f"v_fmac_f32 v{O+16*ct+r}, v{rd(G,ct)+r}, v{T+4+G}")
    p(f"v_and_b32 v{T}, 31, v{L}")
    emit_fsw(p, T + 1, T, T + 2)
    p(f"v_mul_u32_u24 v{T}, 384, v{T}")
    p(f"v_lshrrev_b32 v{T+2}, 5, v{L}")
    p(f"v_lshl_add_u32 v{T}, v{T+2}, 3, v{T}")
    p(f"v_add_u32 v{T}, {TILE}, v{T}")
    p(f"v_xor_b32 v{T+1}, s{S_W}, v{T+1}")
    p(f"v_lshl_add_u32 v{T+2}, v{T+1}, 4, v{T}")
    p(f"v_xor_b32 v{T+1}, 4, v{T+1}")
    p(f"v_lshl_add_u32 v{T+3}, v{T+1}, 4, v{T}")
    for ct in range(6):
        a = O + 16 * ct
        p(f"v_cvt_pk_bf16_f32 v{a}, v{a}, v{a+1}")
        p(f"v_cvt_pk_bf16_f32 v{a+1}, v{a+2}, v{a+3}")
        p(f"ds_write_b64 v{T+2+(ct&1)}, {vr(a,2)} offset:{(ct>>1)*128}")
    stamp(p, 9)
    p("s_barrier ; BAR_8")
    stamps_out(p, 2, SRD_WS, S_W, L)
    p("s_endpgm")

    p.label("k2_loader")
    S_LW = 7
    p(f"s_sub_u32 s{S_LW}, s{S_W}, 4")
    VOFF = 2
    p(f"v_lshlrev_b32 v{VOFF}, 4, v{L}")
    MS = 4
    p(f"v_and_b32 v8, 15, v{L}")
    emit_pi_token(p, 9, 8, 10)
    p(f"s_lshl_b32 s8, s{S_T}, 10")
    p(f"s_lshl_b32 s9, s{S_I}, 5")
    p("s_add_u32 s8, s8, s9")
    p("s_mov_b32 s14, s8")
    p("s_lshl_b32 s8, s8, 3")
    p(f"s_add_u32 s8, s8, {WS_MS}")
    p("v_lshlrev_b32 v10, 3, v9")
    p(f"buffer_load_dwordx2 {vr(MS,2)}, v10, {sr(SRD_WS,4)}, s8 offen")
    p(f"buffer_load_dwordx2 {vr(MS+2,2)}, v10, {sr(SRD_WS,4)}, s8 offen offset:128")
    p(f"s_mul_i32 s10, s{S_T}, 393216")
    p(f"s_add_u32 s11, s{S_I}, s{S_LW}")
    p(f"s_mul_i32 s12, s{S_LW}, {SLOT}")

    def issue_block(r):
        p("s_and_b32 s11, s11, 31")
        p(f"s_mul_i32 s13, s11, {SLOT}")
        p("s_add_u32 s13, s13, s10")
        for k in range(3):
            p(f"s_add_u32 m0, s12, {(r%3)*49152 + k*4096}")
            for q in range(4):
                p(f"buffer_load_dwordx4 v{VOFF}, {sr(SRD_WS,4)}, s13 offen offset:{q*1024} lds")
            if k < 2:
                p("s_add_u32 s13, s13, 4096")
        p("s_add_u32 s11, s11, 4")
    for r in range(3):
        issue_block(r)
    RA = 12
    tile_wr_addrs(p, RA, S_LW, L, 8, 9, 10, 11, 0, ) if False else None
    p(f"s_mov_b32 s40, s{S_LW}")
    tile_wr_addrs(p, RA, 40, L, 8, 9, 10, 11, 0)
    BA2 = 16
    b16_addrs(p, BA2, L, 8, 9, 10, 11, TILE)
    stamp(p, 1)
    p("s_waitcnt vmcnt(24)")
    stamp(p, 2)
    p("s_barrier ; BAR_A")
    RES = 20
    for jj in range(3):
        for tt in range(2):
            p(f"ds_read_b64 {vr(RES+4*jj+2*tt,2)}, v{RA+jj} offset:{tt*6144}")
    p("s_barrier ; BAR_B")
    WV = 64
    for r in range(8):
        if r < 5:
            p("s_waitcnt vmcnt(12)")
        elif r == 5:
            p("s_waitcnt vmcnt(30)")
        elif r == 6:
            p("s_waitcnt vmcnt(18)")
        stamp(p, 3 + r)
        p(f"s_barrier ; BAR_{r}")
        if r + 3 < 8:
            issue_block(r + 3)
        if r == 4:
            p(f"s_mul_i32 s8, s{S_LW}, 18432")
            p(f"s_add_u32 s8, s8, {WS_WVO}")
            for n in range(18):
                p(f"buffer_load_dwordx4 {vr(WV+4*n,4)}, v{VOFF}, {sr(SRD_WS,4)}, s8 offen offset:{(n%4)*1024}")
                if n % 4 == 3:
                    p("s_add_u32 s8, s8, 4096")
    XR = 32
    for jj in range(3):
        for tt in range(2):
            a = XR + 8 * jj + 4 * tt
            h = RES + 4 * jj + 2 * tt
            p(f"v_lshlrev_b32 v{a}, 16, v{h}")
            p(f"v_and_b32 v{a+1}, 0xffff0000, v{h}")
            p(f"v_lshlrev_b32 v{a+2}, 16, v{h+1}")
            p(f"v_and_b32 v{a+3}, 0xffff0000, v{h+1}")
            for r in range(4):
                p(f"v_fma_f32 v{a+r}, v{a+r}, v{MS+2*tt+1}, v{MS+2*tt}")
    p(f"v_and_b32 v8, 15, v{L}")
    emit_pi_token(p, 9, 8, 10)
    p(f"v_bfe_u32 v10, v{L}, 4, 1")
    p("v_lshl_add_u32 v9, v10, 4, v9")
    p("v_mul_u32_u24 v9, 384, v9")
    p(f"v_lshrrev_b32 v10, 5, v{L}")
    p("v_lshl_add_u32 v9, v10, 4, v9")
    p("s_mul_i32 s8, s14, 384")
    p(f"s_mul_i32 s9, s{S_LW}, 96")
    p("s_add_u32 s8, s8, s9")
    p("s_barrier ; BAR_8")
    stamp(p, 11)
    BF = 136
    for tt in range(2):
        for m in range(6):
            p(f"ds_read_b128 {vr(BF+24*tt+4*m,4)}, v{BA2+(m&1)} offset:{tt*6144+(m>>1)*128}")
    for tt in range(2):
        for m in range(6):
            for jj in range(3):
                a = XR + 8 * jj + 4 * tt
                p(f"v_mfma_f32_16x16x32_bf16 {vr(a,4)}, {vr(WV+4*(jj*6+m),4)}, {vr(BF+24*tt+4*m,4)}, {vr(a,4)}")
    for jj in range(3):
        a = XR + 8 * jj
        d = 192 + 4 * jj
        p(f"v_cvt_pk_bf16_f32 v{d}, v{a}, v{a+1}")
        p(f"v_cvt_pk_bf16_f32 v{d+1}, v{a+2}, v{a+3}")
        p(f"v_cvt_pk_bf16_f32 v{d+2}, v{a+4}, v{a+5}")
        p(f"v_cvt_pk_bf16_f32 v{d+3}, v{a+6}, v{a+7}")
        p(f"v_permlane16_swap_b32 v{d}, v{d+2}")
        p(f"v_permlane16_swap_b32 v{d+1}, v{d+3}")
        p(f"buffer_store_dwordx4 {vr(d,4)}, v9, {sr(SRD_OUT,4)}, s8 offen offset:{jj*32}")
    stamp(p, 12)
    stamps_out(p, 2, SRD_WS, S_W, L)
    ht_end(p, 2, L, 2)
    p.label("k2_exit")
    p("s_endpgm")
    return name


def S_W_TMP(p):
    p(f"s_mov_b32 s40, s{S_W}")
    return 40
```

```python
import math
from asmlib import Prog

WS_H2 = 0x000000
WS_MS = 0x300000
WS_WQK = 0x310000
WS_WVO = 0x322000
WS_DBG = 0x400000
WS_BYTES = 268435456
SCALE_LOG2E = (192 ** -0.5) * math.log2(math.e)

KDESC = """.section .rodata,"a"
.p2align 6
.amdhsa_kernel {name}
  .amdhsa_next_free_vgpr {vgpr}
  .amdhsa_next_free_sgpr 102
  .amdhsa_accum_offset {accum}
  .amdhsa_group_segment_fixed_size 0
  .amdhsa_kernarg_size 64
  .amdhsa_user_sgpr_count 2
  .amdhsa_user_sgpr_kernarg_segment_ptr 1
  .amdhsa_system_sgpr_workgroup_id_x 1
.end_amdhsa_kernel
"""


def f2u(x):
    import struct
    return struct.unpack("<I", struct.pack("<f", x))[0]


def hexf(x):
    return "0x%08x" % f2u(x)


def vr(base, n=1):
    return "v%d" % base if n == 1 else "v[%d:%d]" % (base, base + n - 1)


def sr(base, n=1):
    return "s%d" % base if n == 1 else "s[%d:%d]" % (base, base + n - 1)


def make_srd(p, dst, ptr, nbytes):
    p(f"s_mov_b32 s{dst}, s{ptr}")
    p(f"s_mov_b32 s{dst+1}, s{ptr+1}")
    p(f"s_mov_b32 s{dst+2}, {nbytes}")
    p(f"s_mov_b32 s{dst+3}, 0x00020000")


import os
PROF = os.environ.get("PROF", "") != ""
WS_PROF = 0x600000


def stamp(p, i, real=False):
    if PROF:
        p(f"{'s_memrealtime' if real else 's_memtime'} s[{64+2*i}:{65+2*i}]")


def stamps_out(p, kidx, srd, s_wave, lane, tmp=250):
    if not PROF:
        return
    stamp(p, 14)
    stamp(p, 15, True)
    p("s_mov_b64 exec, -1")
    p(f"v_mov_b32 v{tmp}, 0")
    for i in range(16):
        p(f"v_writelane_b32 v{tmp}, s{64+2*i}, {i}")
    p(f"s_lshl_b32 s96, s2, 3")
    p(f"s_add_u32 s96, s96, s{s_wave}")
    p(f"s_lshl_b32 s96, s96, 6")
    p(f"s_add_u32 s96, s96, {WS_PROF + kidx * 0x40000}")
    p(f"v_lshlrev_b32 v{tmp+1}, 2, v{lane}")
    p("s_mov_b64 exec, 0xffff")
    p(f"buffer_store_dword v{tmp}, v{tmp+1}, {sr(srd,4)}, s96 offen")


HT = os.environ.get("HT", "") != ""


def ht_start(p):
    if HT:
        p("s_memrealtime s[98:99]")


def ht_end(p, kidx, lane, slot, tmp=252):
    if not HT:
        return
    lab = f"ht_skip_{kidx}_{len(p.items)}"
    p(f"s_and_b32 s97, s3, 3")
    p("s_cmp_lg_u32 s97, 0")
    p(f"s_cbranch_scc1 {lab}")
    p("s_memrealtime s[100:101]")
    p(f"s_sub_u32 s92, s28, {512*kidx}")
    p("s_subb_u32 s93, s29, 0")
    p("s_mov_b32 s94, 256")
    p("s_mov_b32 s95, 0x00020000")
    p("s_mov_b64 exec, 1")
    p("s_not_b32 s98, s98")
    p(f"v_mov_b32 v{tmp}, s98")
    p(f"v_mov_b32 v{tmp+1}, s100")
    p(f"v_mov_b32 v{tmp+2}, 0")
    p(f"buffer_atomic_umax v{tmp}, v{tmp+2}, s[92:95], 0 offen offset:{8*slot}")
    p(f"buffer_atomic_umax v{tmp+1}, v{tmp+2}, s[92:95], 0 offen offset:{8*slot+4}")
    p.label(lab)
```

```python
import sys, os
sys.path.insert(0, os.path.dirname(os.path.abspath(__file__)))
from common import *
import fold

HEADER = open("standalone__video_timesformer__vision.s.ref").read().split("; Override launch")[0]


def build(kernels):
    launches, bodies, descs = [], [], []
    for gen, grid, block, lds, vgpr in kernels:
        p = Prog()
        name = gen(p)
        bodies.append(p.finalize())
        launches.append(f"; @launch kernel={name} grid=({grid},1,1) block=({block},1,1) lds={lds}")
        descs.append(KDESC.format(name=name, vgpr=vgpr, accum=vgpr))
    s = HEADER + "\n".join(launches) + "\n"
    s += '.amdgcn_target "amdgcn-amd-amdhsa--gfx950"\n.text\n'
    s += "\n".join(bodies)
    s += "\n".join(descs)
    return s


def gen_noop(i):
    def g(p):
        name = f"noop{i}_kernel"
        p(f".globl {name}\n.p2align 8\n.type {name},@function")
        p.label(name)
        p("s_endpgm")
        return name
    return g


def gen_report(nprev):
    def g(p):
        name = "rep_kernel"
        p(f".globl {name}\n.p2align 8\n.type {name},@function")
        p.label(name)
        p("s_cmp_ge_u32 s2, 1")
        p("s_cbranch_scc1 rep_exit")
        p("s_load_dwordx16 s[16:31], s[0:1], 0")
        p(f"s_sub_u32 s92, s28, {512*nprev}")
        p("s_subb_u32 s93, s29, 0")
        p("s_mov_b32 s94, 256")
        p("s_mov_b32 s95, 0x00020000")
        make_srd(p, 32, 28, 256)
        p("v_lshlrev_b32 v1, 2, v0")
        p("buffer_load_dword v2, v1, s[92:95], 0 offen")
        p("buffer_store_dword v2, v1, s[32:35], 0 offen")
        p.label("rep_exit")
        p("s_endpgm")
        return name
    return g


def main():
    which = sys.argv[1] if len(sys.argv) > 1 else "all"
    out = sys.argv[2] if len(sys.argv) > 2 else "standalone__video_timesformer__vision.s"
    ks = []
    nn = 0
    for ch in which:
        if ch == "0":
            ks.append((fold.gen_k0, 36, 256, 0, 256))
        elif ch == "1":
            import k1
            ks.append((k1.gen_k1, 256, 512, 163840, 256))
        elif ch == "2":
            import k2
            ks.append((k2.gen_k2, 256, 512, 163840, 256))
        elif ch == "r":
            ks.append((gen_report(len(ks)), 1, 64, 0, 8))
        elif ch == "n":
            ks.append((gen_noop(nn), 256, 512, 0, 8))
            nn += 1
    open(out, "w").write(build(ks))


main()
```

```python
import sys, os
sys.path.insert(0, "gen")
from common import *
HEADER = open("standalone__video_timesformer__vision.s.ref").read().split("; Override launch")[0]

def gen(tag, X, total=16384, warm=True):
    A = f"a{tag}_kernel"; B = f"b{tag}_kernel"
    npads = total // X
    H = (npads + 6) // 7
    p = Prog()
    p(f".globl {A}\n.p2align 8\n.type {A},@function")
    p.label(A)
    p("v_lshrrev_b32 v2, 6, v0")
    p("v_readfirstlane_b32 s3, v2")
    p("s_mov_b64 exec, 0")
    if warm:
        for w in range(1, 8):
            i = (w - 1) * H
            if i < npads:
                p(f"s_cmp_eq_u32 s3, {w}")
                p(f"s_cbranch_scc1 {B}_pad{i} ; noedge")
    p.label(A + "_ret")
    p("s_mov_b64 exec, -1")
    p("s_endpgm")
    ta = p.finalize()
    p = Prog()
    p(f".globl {B}\n.p2align 8\n.type {B},@function")
    p.label(B)
    p("s_memtime s[40:41]")
    p("s_load_dwordx16 s[16:31], s[0:1], 0")
    p("v_lshrrev_b32 v2, 6, v0")
    p("v_and_b32 v1, 63, v0")
    p("v_readfirstlane_b32 s3, v2")
    p("s_cmp_eq_u32 s3, 0")
    p(f"s_cbranch_scc0 {B}_exit")
    p("s_memtime s[42:43]")
    p("s_memtime s[44:45]")
    p(".p2align 8")
    off = 0
    st = 0
    while off < total:
        if off % X == 0:
            i = off // X
            p(f".L{B}_pad{i}:")
            tgt = f".L{B}_pad{i+1}" if ((i + 1) % H != 0 and i + 1 < npads) else f"{A}_ret"
            p(f".PAD s_cbranch_execz {tgt}")
            p("s_nop 0")
            off += 8
            continue
        if off % 1024 == 520:
            p(f"s_memtime s[{46+2*st}:{47+2*st}]")
            st += 1
            off += 8
            continue
        p(f"v_add_f32_e64 v{8+((off//8)%16)}, v{8+((off//8)%16)}, v3")
        off += 8
    p(f"s_memtime s[{46+2*st}:{47+2*st}]")
    st += 1
    p("s_waitcnt lgkmcnt(0)")
    make_srd(p, 32, 30, WS_BYTES)
    p("v_mov_b32 v6, 0")
    for b in range(1, 3 + st):
        p(f"s_sub_u32 s{40+2*b}, s{40+2*b}, s40")
        p(f"v_writelane_b32 v6, s{40+2*b}, {b-1}")
    p("s_lshl_b32 s6, s2, 3")
    p("s_add_u32 s6, s6, s3")
    p("s_lshl_b32 s6, s6, 7")
    p("v_lshlrev_b32 v7, 2, v1")
    p("s_mov_b64 exec, 0xffffffff")
    p("buffer_store_dword v6, v7, s[32:35], s6 offen")
    p.label(B + "_exit")
    p("s_endpgm")
    tb = p.finalize().replace(".PAD ", "  ")
    return A, B, ta, tb

import re
for tag, X, warm in [("n", 512, False), ("w", 512, True)]:
    A = f"a{tag}_kernel"; B = f"b{tag}_kernel"
    import asmlib
    old = asmlib.Ins.__init__
    def patched(self, text):
        old(self, text)
        if "noedge" in self.note:
            self.kind = "salu"; self.target = None
    asmlib.Ins.__init__ = patched
    A, B, ta, tb = gen(tag, X, warm=warm)
    asmlib.Ins.__init__ = old
    ta = ta.replace(f"{B}_pad", f".L{B}_pad")
    s = HEADER + f"; @launch kernel={A} grid=(256,1,1) block=(512,1,1) lds=163840\n; @launch kernel={B} grid=(256,1,1) block=(512,1,1) lds=163840\n"
    s += '.amdgcn_target "amdgcn-amd-amdhsa--gfx950"\n.text\n' + ta + tb + KDESC.format(name=A, vgpr=128, accum=128) + KDESC.format(name=B, vgpr=128, accum=128)
    open(f"ic6_{tag}.s", "w").write(s)
```

```python
from common import *
import fold

CH = 36864
TILE = 147456
SP = 159744
YSTR = 784

L = 1
XL = 4
XF = 16
D = 40
HO = 64
QA = 112
KA_ = 136
VA_ = 160
WF = 184
AD = 220
T = 232

S_W = 3
S_N0 = 4
SRD_X = 32
SRD_WQ = 36
SRD_WO = 40
SRD_WS = 44
SRD_WQS = 48
SRD_WOS = 52


def dpp_reduce8(p, v):
    p(f"v_add_f32_dpp v{v}, v{v}, v{v} quad_perm:[1,0,3,2] row_mask:0xf bank_mask:0xf")
    p(f"v_add_f32_dpp v{v}, v{v}, v{v} quad_perm:[2,3,0,1] row_mask:0xf bank_mask:0xf")
    p(f"v_add_f32_dpp v{v}, v{v}, v{v} row_half_mirror row_mask:0xf bank_mask:0xf")


def layernorm(p, X, Dd, t):
    p(f"v_pk_add_f32 {vr(t,2)}, {vr(X,2)}, {vr(X+2,2)}")
    p(f"v_pk_add_f32 {vr(t+2,2)}, {vr(X+4,2)}, {vr(X+6,2)}")
    for i in range(8, 24, 4):
        p(f"v_pk_add_f32 {vr(t,2)}, {vr(t,2)}, {vr(X+i,2)}")
        p(f"v_pk_add_f32 {vr(t+2,2)}, {vr(t+2,2)}, {vr(X+i+2,2)}")
    p(f"v_pk_add_f32 {vr(t,2)}, {vr(t,2)}, {vr(t+2,2)}")
    p(f"v_add_f32 v{t}, v{t}, v{t+1}")
    dpp_reduce8(p, t)
    p(f"v_mul_f32 v{t}, {hexf(1.0/192)}, v{t}")
    p(f"v_sub_f32 v{t+2}, 0, v{t}")
    p(f"v_sub_f32 v{t+3}, 0, v{t}")
    for i in range(0, 24, 2):
        p(f"v_pk_add_f32 {vr(Dd+i,2)}, {vr(X+i,2)}, {vr(t+2,2)}")
    p(f"v_pk_mul_f32 {vr(t+4,2)}, {vr(Dd,2)}, {vr(Dd,2)}")
    p(f"v_pk_mul_f32 {vr(t+6,2)}, {vr(Dd+2,2)}, {vr(Dd+2,2)}")
    for i in range(4, 24, 4):
        p(f"v_pk_fma_f32 {vr(t+4,2)}, {vr(Dd+i,2)}, {vr(Dd+i,2)}, {vr(t+4,2)}")
        p(f"v_pk_fma_f32 {vr(t+6,2)}, {vr(Dd+i+2,2)}, {vr(Dd+i+2,2)}, {vr(t+6,2)}")
    p(f"v_pk_add_f32 {vr(t+4,2)}, {vr(t+4,2)}, {vr(t+6,2)}")
    p(f"v_add_f32 v{t+4}, v{t+4}, v{t+5}")
    dpp_reduce8(p, t + 4)
    p(f"v_mov_b32 v{t+5}, {hexf(1e-5)}")
    p(f"v_fmac_f32 v{t+5}, {hexf(1.0/192)}, v{t+4}")
    p(f"v_rsq_f32 v{t+2}, v{t+5}")
    p(f"v_mov_b32 v{t+3}, v{t+2}")


import os
DBG = os.environ.get("K1_DBG", "")


def dump(p, stage, base, n):
    if DBG != stage:
        return
    lab = "k1_dbgskip_" + stage
    p("s_cmp_ge_u32 s2, 64")
    p(f"s_cbranch_scc1 {lab}")
    p(f"s_mul_i32 s60, s5, {32*256}")
    p(f"s_add_u32 s60, s60, {WS_DBG}")
    p(f"v_lshlrev_b32 v255, 2, v{L}")
    for i in range(n):
        p(f"buffer_store_dword v{base+i}, v255, {sr(SRD_WS,4)}, s60 offen")
        p("s_add_u32 s60, s60, 256")
    p.label(lab)


def gen_k1(p, with_fold=False):
    name = "k1_kernel"
    p(f".globl {name}\n.p2align 8\n.type {name},@function")
    p.label(name)
    p("s_cmp_ge_u32 s2, 256")
    p("s_cbranch_scc1 k1_exit")
    ht_start(p)
    stamp(p, 13, True)
    stamp(p, 0)
    p("s_load_dwordx16 s[16:31], s[0:1], 0")
    p(f"v_and_b32 v{L}, 63, v0")
    p("v_lshrrev_b32 v2, 6, v0")
    p(f"v_readfirstlane_b32 s{S_W}, v2")
    p(f"s_lshl_b32 s{S_N0}, s2, 2")
    make_srd(p, SRD_X, 16, 8 * 1024 * 192 * 2)
    stamp(p, 10)
    make_srd(p, SRD_WQ, 18, 192 * 576 * 2)
    make_srd(p, SRD_WO, 20, 192 * 192 * 2)
    make_srd(p, SRD_WS, 30, WS_BYTES)
    p(f"s_cmp_ge_u32 s{S_W}, 4")
    p("s_cbranch_scc1 k1_loader")

    p(f"v_lshrrev_b32 v2, 3, v{L}")
    p(f"v_and_b32 v3, 7, v{L}")
    p(f"v_mul_u32_u24 v{T}, 393216, v2")
    p(f"v_lshl_add_u32 v{T}, v3, 4, v{T}")
    p(f"s_add_u32 s5, s{S_N0}, s{S_W}")
    p("s_mul_i32 s6, s5, 384")
    for a in range(3):
        p(f"buffer_load_dwordx4 {vr(XL+4*a,4)}, v{T}, {sr(SRD_X,4)}, s6 offen offset:{a*128}")
    p(f"v_lshrrev_b32 v{T+1}, 4, v{L}")
    p(f"v_bfe_u32 v{T+2}, v{L}, 2, 2")
    p(f"v_lshl_add_u32 v{T+2}, v{T+1}, 3, v{T+2}")
    p(f"v_mul_u32_u24 v{T+2}, 384, v{T+2}")
    p(f"v_and_b32 v{T+3}, 1, v{L}")
    p(f"v_lshl_add_u32 v{T+2}, v{T+3}, 3, v{T+2}")
    p(f"v_bfe_u32 v{T+3}, v{L}, 3, 1")
    p(f"v_bfe_u32 v{T+4}, v{L}, 4, 1")
    p(f"v_lshlrev_b32 v{T+3}, 2, v{T+3}")
    p(f"v_lshl_or_b32 v{T+3}, v{T+4}, 1, v{T+3}")
    p(f"v_bfe_u32 v{T+4}, v{L}, 1, 1")
    p(f"s_mul_i32 s7, s{S_W}, 6")
    p(f"v_add_u32 v{T+4}, s7, v{T+4}")
    for jj in range(3):
        p(f"v_add_u32 v{T+5}, {2*jj}, v{T+4}")
        p(f"v_xor_b32 v{T+5}, v{T+5}, v{T+3}")
        p(f"v_lshl_add_u32 v{AD+jj}, v{T+5}, 4, v{T+2}")
        p(f"v_add_u32 v{AD+3+jj}, {2*CH}, v{AD+jj}")
    TR = AD + 6
    p(f"v_and_b32 v{T+2}, 15, v{L}")
    p(f"v_bfe_u32 v{T+3}, v{L}, 1, 3")
    p(f"v_xor_b32 v{T+3}, v{T+3}, v{T+1}")
    p(f"v_mul_u32_u24 v{T+2}, 384, v{T+2}")
    p(f"v_add_u32 v{T+2}, {TILE}, v{T+2}")
    p(f"v_lshl_add_u32 v{TR}, v{T+3}, 4, v{T+2}")
    p(f"v_xor_b32 v{T+3}, 4, v{T+3}")
    p(f"v_lshl_add_u32 v{TR+1}, v{T+3}, 4, v{T+2}")
    OW = AD + 8
    p(f"v_bfe_u32 v{T+3}, v{L}, 1, 3")
    p(f"v_bfe_u32 v{T+4}, v{L}, 4, 1")
    p(f"v_lshl_add_u32 v{T+2}, v{T+4}, 3, v{T+2}")
    p(f"v_lshrrev_b32 v{T+4}, 5, v{L}")
    p(f"v_add_u32 v{T+4}, s7, v{T+4}")
    for jj in range(3):
        p(f"v_add_u32 v{T+5}, {2*jj}, v{T+4}")
        p(f"v_xor_b32 v{T+5}, v{T+5}, v{T+3}")
        p(f"v_lshl_add_u32 v{OW+jj}, v{T+5}, 4, v{T+2}")
    HW = AD + 11
    p(f"s_lshl_b32 s8, s{S_W}, 3")
    p(f"v_add_u32 v{T+2}, s8, v2")
    p(f"v_bfe_u32 v{T+3}, v{T+2}, 1, 3")
    p(f"v_xor_b32 v{T+3}, v{T+3}, v3")
    p(f"v_mul_u32_u24 v{T+4}, 384, v{T+2}")
    p(f"v_lshl_add_u32 v{HW}, v{T+3}, 4, v{T+4}")
    p(f"v_add_u32 v{HW}, {TILE}, v{HW}")
    YR = 2
    p(f"v_mul_u32_u24 v{T+4}, {YSTR}, v{T+2}")
    p(f"v_lshl_add_u32 v{YR}, v3, 5, v{T+4}")
    stamp(p, 11)
    for i in range(12):
        if i == 11 and PROF:
            p(f"v_mov_b32 v254, v{XL+11}")
            stamp(p, 12)
        p(f"v_lshlrev_b32 v{XF+2*i}, 16, v{XL+i}")
        p(f"v_and_b32 v{XF+2*i+1}, 0xffff0000, v{XL+i}")
    layernorm(p, XF, D, T)
    for i in range(0, 24, 2):
        p(f"v_pk_mul_f32 {vr(D+i,2)}, {vr(D+i,2)}, {vr(T+2,2)}")
    for i in range(12):
        p(f"v_cvt_pk_bf16_f32 v{XL+i}, v{D+2*i}, v{D+2*i+1}")
    for a in range(3):
        p(f"ds_write_b128 v{HW}, {vr(XL+4*a,4)} offset:{a*128}")
    dump(p, "h", XL, 12)

    def read_operand():
        for tt in range(2):
            for ks in range(6):
                p(f"ds_read_b128 {vr(HO+24*tt+4*ks,4)}, v{TR+(ks&1)} offset:{tt*6144+(ks>>1)*128}")

    def wfrag_reads(chunk):
        slot = chunk % 4
        base = AD if slot < 2 else AD + 3
        imm0 = (slot & 1) * CH
        for ks in range(3):
            for jj in range(3):
                f = WF + 4 * (ks * 3 + jj)
                for h in range(2):
                    p(f"ds_read_b64_tr_b16 {vr(f+2*h,2)}, v{base+jj} offset:{imm0+ks*12288+h*1536}")

    def gemm_chunk(chunk, accbase, w_is_a):
        half = chunk & 1
        wfrag_reads(chunk)
        for ks in range(3):
            for jj in range(3):
                f = WF + 4 * (ks * 3 + jj)
                for tt in range(2):
                    a = accbase + 8 * jj + 4 * tt
                    c = "0" if (half == 0 and ks == 0) else vr(a, 4)
                    h = vr(HO + 24 * tt + 4 * (3 * half + ks), 4)
                    if w_is_a:
                        p(f"v_mfma_f32_16x16x32_bf16 {vr(a,4)}, {vr(f,4)}, {h}, {c}")
                    else:
                        p(f"v_mfma_f32_16x16x32_bf16 {vr(a,4)}, {h}, {vr(f,4)}, {c}")

    def pack(accbase, dst):
        for jj in range(3):
            for tt in range(2):
                a = accbase + 8 * jj + 4 * tt
                d = dst + 4 * jj + 2 * tt
                p(f"v_cvt_pk_bf16_f32 v{d}, v{a}, v{a+1}")
                p(f"v_cvt_pk_bf16_f32 v{d+1}, v{a+2}, v{a+3}")

    p("s_barrier ; B0")
    stamp(p, 1)
    read_operand()
    gemm_chunk(0, QA, True)
    p("s_barrier ; B1")
    stamp(p, 2)
    gemm_chunk(1, QA, True)
    p("s_barrier ; B2")
    stamp(p, 3)
    gemm_chunk(2, KA_, True)
    p("s_barrier ; B3")
    stamp(p, 4)
    gemm_chunk(3, KA_, True)
    QP0, KP0 = D, D + 12
    for tt in range(2):
        for jj in range(3):
            a = QA + 8 * jj + 4 * tt
            d = QP0 + 6 * tt + 2 * jj
            p(f"v_cvt_pk_bf16_f32 v{d}, v{a}, v{a+1}")
            p(f"v_cvt_pk_bf16_f32 v{d+1}, v{a+2}, v{a+3}")
            a = KA_ + 8 * jj + 4 * tt
            d = KP0 + 6 * tt + 2 * jj
            p(f"v_cvt_pk_bf16_f32 v{d}, v{a}, v{a+1}")
            p(f"v_cvt_pk_bf16_f32 v{d+1}, v{a+2}, v{a+3}")
    dump(p, "qk", D, 24)
    SA = QA
    for tt in range(2):
        p(f"v_mfma_f32_16x16x32_bf16 {vr(SA+4*tt,4)}, {vr(KP0+6*tt,4)}, {vr(QP0+6*tt,4)}, 0")
    for tt in range(2):
        p(f"v_mfma_f32_16x16x16_bf16 {vr(SA+4*tt,4)}, {vr(KP0+6*tt+4,2)}, {vr(QP0+6*tt+4,2)}, {vr(SA+4*tt,4)}")
    SPW = T + 8
    SPR = T + 9
    p(f"v_lshrrev_b32 v{T}, 4, v{L}")
    p(f"v_and_b32 v{T+1}, 7, v{L}")
    p(f"v_lshl_add_u32 v{T}, v{T}, 3, v{T+1}")
    p(f"v_lshlrev_b32 v{T}, 4, v{T}")
    p(f"v_add_u32 v{SPR}, {SP}, v{T}")
    p(f"s_lshl_b32 s8, s{S_W}, 10")
    p(f"v_add_u32 v{SPW}, s8, v{SPR}")
    p("s_mov_b32 s10, 0x00FF00FF")
    p("s_mov_b32 s11, 0xFF00FF00")
    p("s_mov_b64 exec, s[10:11]")
    for tt in range(2):
        p(f"ds_write_b128 v{SPW}, {vr(SA+4*tt,4)} offset:{tt*512}")
    p("s_mov_b64 exec, -1")
    p("s_barrier ; B4")
    stamp(p, 5)
    SR = QA + 8
    for tt in range(2):
        for w in range(4):
            p(f"ds_read_b128 {vr(SR+16*tt+4*w,4)}, v{SPR} offset:{w*1024+tt*512}")
    gemm_chunk(4, VA_, False)
    PP = D
    c1 = (192 ** -0.5) * math.log2(math.e)
    for tt in range(2):
        s = SR + 16 * tt
        for r in range(4):
            p(f"v_add_f32 v{s+r}, v{s+r}, v{s+4+r}")
            p(f"v_add_f32 v{s+8+r}, v{s+8+r}, v{s+12+r}")
            p(f"v_add_f32 v{s+r}, v{s+r}, v{s+8+r}")
            p(f"v_mul_f32 v{s+r}, {hexf(c1)}, v{s+r}")
        p(f"v_max3_f32 v{T}, v{s}, v{s+1}, v{s+2}")
        p(f"v_max_f32 v{T}, v{T}, v{s+3}")
        p(f"v_mov_b32 v{T+1}, v{T}")
        p(f"v_permlane16_swap_b32 v{T}, v{T+1}")
        p(f"v_max_f32 v{T}, v{T}, v{T+1}")
        for r in range(4):
            p(f"v_sub_f32 v{s+r}, v{s+r}, v{T}")
            p(f"v_exp_f32 v{s+r}, v{s+r}")
        p(f"v_add_f32 v{T}, v{s}, v{s+1}")
        p(f"v_add_f32 v{T+1}, v{s+2}, v{s+3}")
        p(f"v_add_f32 v{T}, v{T}, v{T+1}")
        p(f"v_mov_b32 v{T+1}, v{T}")
        p(f"v_permlane16_swap_b32 v{T}, v{T+1}")
        p(f"v_add_f32 v{T}, v{T}, v{T+1}")
        p(f"v_rcp_f32 v{T}, v{T}")
        for r in range(4):
            p(f"v_mul_f32 v{s+r}, v{s+r}, v{T}")
        p(f"v_cvt_pk_bf16_f32 v{PP+2*tt}, v{s}, v{s+1}")
        p(f"v_cvt_pk_bf16_f32 v{PP+2*tt+1}, v{s+2}, v{s+3}")
        p("s_mov_b64 vcc, s[10:11]")
        p(f"v_cndmask_b32 v{PP+2*tt}, 0, v{PP+2*tt}, vcc")
        p(f"v_cndmask_b32 v{PP+2*tt+1}, 0, v{PP+2*tt+1}, vcc")
    dump(p, "p", PP, 4)
    p("s_barrier ; B5")
    stamp(p, 6)
    gemm_chunk(5, VA_, False)
    VP = D + 4
    pack(VA_, VP)
    dump(p, "v", VP, 12)
    OA = QA
    for jj in range(3):
        for tt in range(2):
            p(f"v_mfma_f32_16x16x16_bf16 {vr(OA+8*jj+4*tt,4)}, {vr(VP+4*jj+2*tt,2)}, {vr(PP+2*tt,2)}, 0")
    pack(OA, VP)
    dump(p, "o", VP, 12)
    for jj in range(3):
        for tt in range(2):
            p(f"ds_write_b64 v{OW+jj}, {vr(VP+4*jj+2*tt,2)} offset:{tt*6144}")
    p("s_barrier ; B6")
    stamp(p, 7)
    read_operand()
    YA = VA_
    gemm_chunk(6, YA, True)
    p("s_barrier ; B7")
    stamp(p, 8)
    gemm_chunk(7, YA, True)
    dump(p, "y", YA, 24)
    p(f"v_and_b32 v{T}, 15, v{L}")
    p(f"v_mul_u32_u24 v{T}, {YSTR}, v{T}")
    p(f"v_lshrrev_b32 v{T+1}, 4, v{L}")
    p(f"v_lshl_add_u32 v{T}, v{T+1}, 4, v{T}")
    p(f"s_mul_i32 s8, s{S_W}, 192")
    p(f"v_add_u32 v{T}, s8, v{T}")
    for jj in range(3):
        for tt in range(2):
            p(f"ds_write_b128 v{T}, {vr(YA+8*jj+4*tt,4)} offset:{tt*16*YSTR+jj*64}")
    p("s_barrier ; B8")
    stamp(p, 9)
    for a in range(3):
        for h in range(2):
            p(f"ds_read_b128 {vr(D+8*a+4*h,4)}, v{YR} offset:{a*256+h*16}")
    for i in range(0, 24, 2):
        p(f"v_pk_add_f32 {vr(XF+i,2)}, {vr(XF+i,2)}, {vr(D+i,2)}")
    layernorm(p, XF, D, T)
    for i in range(0, 24, 2):
        p(f"v_pk_mul_f32 {vr(D+i,2)}, {vr(D+i,2)}, {vr(T+2,2)}")
    for i in range(12):
        p(f"v_cvt_pk_bf16_f32 v{XL+i}, v{D+2*i}, v{D+2*i+1}")
    p("s_bfe_u32 s8, s5, 0x10001")
    p("s_lshl_b32 s8, s8, 2")
    p("s_bfe_u32 s9, s5, 0x10003")
    p("s_lshl_b32 s9, s9, 1")
    p("s_or_b32 s8, s8, s9")
    p("s_bfe_u32 s9, s5, 0x10002")
    p("s_or_b32 s8, s8, s9")
    p(f"v_lshrrev_b32 v{T+6}, 3, v{L}")
    p(f"v_mul_u32_u24 v{T+7}, 393216, v{T+6}")
    p(f"v_xor_b32 v{T+8}, s8, v3")
    p(f"v_lshl_add_u32 v{T+7}, v{T+8}, 4, v{T+7}")
    for a in range(3):
        p(f"buffer_store_dwordx4 {vr(XL+4*a,4)}, v{T+7}, {sr(SRD_WS,4)}, s6 offen offset:{a*128}")
    p(f"v_mul_f32 v{T+1}, v{T+5}, v{T+2}")
    p(f"v_lshlrev_b32 v{T+7}, 13, v{T+6}")
    p("s_lshl_b32 s9, s5, 3")
    p(f"s_add_u32 s9, s9, {WS_MS}")
    p("s_mov_b32 s10, 0x01010101")
    p("s_mov_b32 s11, 0x01010101")
    p("s_mov_b64 exec, s[10:11]")
    p(f"buffer_store_dwordx2 {vr(T,2)}, v{T+7}, {sr(SRD_WS,4)}, s9 offen")
    stamps_out(p, 1, SRD_WS, S_W, L)
    ht_end(p, 1, L, 1)
    p("s_endpgm")

    p.label("k1_loader")
    S_LW = 7
    p(f"s_sub_u32 s{S_LW}, s{S_W}, 4")
    VQ = 4
    VO = 8
    for u in range(3):
        p(f"s_lshl_b32 s8, s{S_LW}, 6")
        p(f"s_add_u32 s8, s8, {256*u}")
        p(f"v_add_u32 v12, s8, v{L}")
        p("v_mul_u32_u24 v13, 2731, v12")
        p("v_lshrrev_b32 v13, 16, v13")
        p("v_mul_u32_u24 v14, 24, v13")
        p("v_sub_u32 v14, v12, v14")
        p("v_and_b32 v15, 2, v13")
        p("v_lshlrev_b32 v15, 1, v15")
        p("v_bfe_u32 v16, v13, 3, 1")
        p("v_lshl_or_b32 v15, v16, 1, v15")
        p("v_xor_b32 v14, v14, v15")
        p("v_lshlrev_b32 v14, 4, v14")
        p(f"v_mul_u32_u24 v15, 1152, v13")
        p(f"v_add_u32 v{VQ+u}, v15, v14")
        p(f"v_mul_u32_u24 v15, 384, v13")
        p(f"v_add_u32 v{VO+u}, v15, v14")
    p(f"s_lshl_b32 s12, s{S_LW}, 10")

    def issue_chunk(c):
        slot = c % 4
        half = c & 1
        for ks in range(3):
            if c < 6:
                soff = (96 * half + 32 * ks) * 1152 + (c >> 1) * 384
                srd, vo = SRD_WQ, VQ
            else:
                soff = (96 * half + 32 * ks) * 384
                srd, vo = SRD_WO, VO
            p(f"s_mov_b32 s13, {soff}")
            for u in range(3):
                p(f"s_add_u32 m0, s12, {slot*CH + ks*12288 + u*4096}")
                p(f"buffer_load_dwordx4 v{vo+u}, {sr(srd,4)}, s13 offen lds")
    for c in range(4):
        issue_chunk(c)
        if c == 0:
            stamp(p, 11)
    stamp(p, 12)
    waits = [27, 18, 18, 18, 18, 18, 9, 0]
    for b in range(8):
        p(f"s_waitcnt vmcnt({waits[b]})")
        stamp(p, b + 1)
        p(f"s_barrier ; B{b}")
        if 1 <= b <= 4:
            issue_chunk(b + 3)
    stamps_out(p, 1, SRD_WS, S_W, L)
    p.label("k1_exit")
    p("s_endpgm")
    return name
```

```python
from common import *
import fold

CH = 36864
TILE = 147456
SP = 159744
YSTR = 784

L = 1
XL = 4
XF = 16
D = 40
HO = 64
QA = 112
KA_ = 136
VA_ = 160
WF = 184
AD = 220
T = 232

S_W = 3
S_N0 = 4
SRD_X = 32
SRD_WQ = 36
SRD_WO = 40
SRD_WS = 44
SRD_WQS = 48
SRD_WOS = 52


def dpp_reduce8(p, v):
    p(f"v_add_f32_dpp v{v}, v{v}, v{v} quad_perm:[1,0,3,2] row_mask:0xf bank_mask:0xf")
    p(f"v_add_f32_dpp v{v}, v{v}, v{v} quad_perm:[2,3,0,1] row_mask:0xf bank_mask:0xf")
    p(f"v_add_f32_dpp v{v}, v{v}, v{v} row_half_mirror row_mask:0xf bank_mask:0xf")


def layernorm(p, X, Dd, t):
    p(f"v_pk_add_f32 {vr(t,2)}, {vr(X,2)}, {vr(X+2,2)}")
    p(f"v_pk_add_f32 {vr(t+2,2)}, {vr(X+4,2)}, {vr(X+6,2)}")
    for i in range(8, 24, 4):
        p(f"v_pk_add_f32 {vr(t,2)}, {vr(t,2)}, {vr(X+i,2)}")
        p(f"v_pk_add_f32 {vr(t+2,2)}, {vr(t+2,2)}, {vr(X+i+2,2)}")
    p(f"v_pk_add_f32 {vr(t,2)}, {vr(t,2)}, {vr(t+2,2)}")
    p(f"v_add_f32 v{t}, v{t}, v{t+1}")
    dpp_reduce8(p, t)
    p(f"v_mul_f32 v{t}, {hexf(1.0/192)}, v{t}")
    p(f"v_sub_f32 v{t+2}, 0, v{t}")
    p(f"v_sub_f32 v{t+3}, 0, v{t}")
    for i in range(0, 24, 2):
        p(f"v_pk_add_f32 {vr(Dd+i,2)}, {vr(X+i,2)}, {vr(t+2,2)}")
    p(f"v_pk_mul_f32 {vr(t+4,2)}, {vr(Dd,2)}, {vr(Dd,2)}")
    p(f"v_pk_mul_f32 {vr(t+6,2)}, {vr(Dd+2,2)}, {vr(Dd+2,2)}")
    for i in range(4, 24, 4):
        p(f"v_pk_fma_f32 {vr(t+4,2)}, {vr(Dd+i,2)}, {vr(Dd+i,2)}, {vr(t+4,2)}")
        p(f"v_pk_fma_f32 {vr(t+6,2)}, {vr(Dd+i+2,2)}, {vr(Dd+i+2,2)}, {vr(t+6,2)}")
    p(f"v_pk_add_f32 {vr(t+4,2)}, {vr(t+4,2)}, {vr(t+6,2)}")
    p(f"v_add_f32 v{t+4}, v{t+4}, v{t+5}")
    dpp_reduce8(p, t + 4)
    p(f"v_mov_b32 v{t+5}, {hexf(1e-5)}")
    p(f"v_fmac_f32 v{t+5}, {hexf(1.0/192)}, v{t+4}")
    p(f"v_rsq_f32 v{t+2}, v{t+5}")
    p(f"v_mov_b32 v{t+3}, v{t+2}")


import os
DBG = os.environ.get("K1_DBG", "")


def dump(p, stage, base, n):
    if DBG != stage:
        return
    lab = "k1_dbgskip_" + stage
    p("s_cmp_ge_u32 s2, 64")
    p(f"s_cbranch_scc1 {lab}")
    p(f"s_mul_i32 s60, s5, {32*256}")
    p(f"s_add_u32 s60, s60, {WS_DBG}")
    p(f"v_lshlrev_b32 v255, 2, v{L}")
    for i in range(n):
        p(f"buffer_store_dword v{base+i}, v255, {sr(SRD_WS,4)}, s60 offen")
        p("s_add_u32 s60, s60, 256")
    p.label(lab)


PREF = os.environ.get('NOPREF', '') == ''
WARM_NEXT = os.environ.get('NOWARMNEXT', '') == ''


def gen_k1(p, with_fold=True):
    name = "k1_kernel"
    p(f".globl {name}\n.p2align 8\n.type {name},@function")
    p.label(name)
    p("s_cmp_ge_u32 s2, 256")
    p("s_cbranch_scc1 k1_exit")
    ht_start(p)
    stamp(p, 13, True)
    stamp(p, 0)
    p("s_load_dwordx16 s[16:31], s[0:1], 0")
    p(f"v_and_b32 v{L}, 63, v0")
    p("v_lshrrev_b32 v2, 6, v0")
    p(f"v_readfirstlane_b32 s{S_W}, v2")
    p(f"s_lshl_b32 s{S_N0}, s2, 2")
    make_srd(p, SRD_X, 16, 8 * 1024 * 192 * 2)
    stamp(p, 10)
    make_srd(p, SRD_WQ, 18, 192 * 576 * 2)
    make_srd(p, SRD_WO, 20, 192 * 192 * 2)
    make_srd(p, SRD_WS, 30, WS_BYTES)
    p(f"s_cmp_ge_u32 s{S_W}, 4")
    p("s_cbranch_scc1 k1_loader")

    p(f"v_lshrrev_b32 v2, 3, v{L}")
    p(f"v_and_b32 v3, 7, v{L}")
    p(f"v_mul_u32_u24 v{T}, 393216, v2")
    p(f"v_lshl_add_u32 v{T}, v3, 4, v{T}")
    p(f"s_add_u32 s5, s{S_N0}, s{S_W}")
    p("s_mul_i32 s6, s5, 384")
    for a in range(3):
        p(f"buffer_load_dwordx4 {vr(XL+4*a,4)}, v{T}, {sr(SRD_X,4)}, s6 offen offset:{a*128}")
    p(";@nopad")
    p("s_mov_b64 exec, 0")
    for c in range(4):
        p(f"s_cmp_eq_u32 s{S_W}, {c}")
        p(f"s_cbranch_scc1 @chain:k1:{c} ; noedge")
    p("s_branch k1_retc")
    p(";@padok")
    p.label("k1_loader")
    S_LW = 7
    p(f"s_sub_u32 s{S_LW}, s{S_W}, 4")
    if PREF:
        p("s_lshr_b32 s8, s2, 3")
        p(f"v_lshlrev_b32 v20, 6, v{L}")
        p(f"s_cmp_eq_u32 s{S_LW}, 2")
        p("s_cbranch_scc1 k1_pf_o")
        p("s_mul_i32 s8, s8, 6912")
        p(f"s_lshl_b32 s9, s{S_LW}, 12")
        p("s_add_u32 s8, s8, s9")
        p(f"s_cmp_eq_u32 s{S_LW}, 3")
        p("s_cbranch_scc1 k1_pf_done")
        p(f"buffer_load_dword v21, v20, {sr(SRD_WQ,4)}, s8 offen")
        p("s_branch k1_pf_done")
        p.label("k1_pf_o")
        p("s_mul_i32 s8, s8, 2304")
        p(f"buffer_load_dword v21, v20, {sr(SRD_WO,4)}, s8 offen")
        p.label("k1_pf_done")
    VQ = 4
    VO = 8
    for u in range(3):
        p(f"s_lshl_b32 s8, s{S_LW}, 6")
        p(f"s_add_u32 s8, s8, {256*u}")
        p(f"v_add_u32 v12, s8, v{L}")
        p("v_mul_u32_u24 v13, 2731, v12")
        p("v_lshrrev_b32 v13, 16, v13")
        p("v_mul_u32_u24 v14, 24, v13")
        p("v_sub_u32 v14, v12, v14")
        p("v_and_b32 v15, 2, v13")
        p("v_lshlrev_b32 v15, 1, v15")
        p("v_bfe_u32 v16, v13, 3, 1")
        p("v_lshl_or_b32 v15, v16, 1, v15")
        p("v_xor_b32 v14, v14, v15")
        p("v_lshlrev_b32 v14, 4, v14")
        p(f"v_mul_u32_u24 v15, 1152, v13")
        p(f"v_add_u32 v{VQ+u}, v15, v14")
        p(f"v_mul_u32_u24 v15, 384, v13")
        p(f"v_add_u32 v{VO+u}, v15, v14")
    p(f"s_lshl_b32 s12, s{S_LW}, 10")
    p(f"s_cmp_eq_u32 s{S_LW}, 0")
    p("s_cselect_b32 s15, s2, 999")

    def issue_chunk(c):
        slot = c % 4
        half = c & 1
        for ks in range(3):
            if c < 6:
                soff = (96 * half + 32 * ks) * 1152 + (c >> 1) * 384
                srd, vo = SRD_WQ, VQ
            else:
                soff = (96 * half + 32 * ks) * 384
                srd, vo = SRD_WO, VO
            p(f"s_mov_b32 s13, {soff}")
            for u in range(3):
                p(f"s_add_u32 m0, s12, {slot*CH + ks*12288 + u*4096}")
                p(f"buffer_load_dwordx4 v{vo+u}, {sr(srd,4)}, s13 offen lds")
    for c in range(3):
        issue_chunk(c)
        if c == 0:
            stamp(p, 11)
    stamp(p, 12)
    waits = [18, 18, 18, 18, 18, 18, 9, 0]
    for b in range(8):
        p(f"s_waitcnt vmcnt({waits[b]})")
        stamp(p, b + 1)
        p(f"s_barrier ; B{b}")
        if 0 <= b <= 4:
            issue_chunk(b + 3)
        if b == 4 and with_fold:
            p("s_cmp_lt_u32 s15, 144")
            p("s_cbranch_scc1 k1_fold")
    stamps_out(p, 1, SRD_WS, S_W, L)
    if WARM_NEXT:
        p(";@nopad")
        p("s_mov_b64 exec, 0")
        for c in range(4):
            p(f"s_cmp_eq_u32 s{S_LW}, {c}")
            p(f"s_cbranch_scc1 @apad:k2:{c} ; noedge")
        p(";@padok")
    p.label("k1_exit")
    p("s_endpgm")

    p.label("k1_retc")
    p("s_mov_b64 exec, -1")
    p(f"v_lshrrev_b32 v{T+1}, 4, v{L}")
    p(f"v_bfe_u32 v{T+2}, v{L}, 2, 2")
    p(f"v_lshl_add_u32 v{T+2}, v{T+1}, 3, v{T+2}")
    p(f"v_mul_u32_u24 v{T+2}, 384, v{T+2}")
    p(f"v_and_b32 v{T+3}, 1, v{L}")
    p(f"v_lshl_add_u32 v{T+2}, v{T+3}, 3, v{T+2}")
    p(f"v_bfe_u32 v{T+3}, v{L}, 3, 1")
    p(f"v_bfe_u32 v{T+4}, v{L}, 4, 1")
    p(f"v_lshlrev_b32 v{T+3}, 2, v{T+3}")
    p(f"v_lshl_or_b32 v{T+3}, v{T+4}, 1, v{T+3}")
    p(f"v_bfe_u32 v{T+4}, v{L}, 1, 1")
    p(f"s_mul_i32 s7, s{S_W}, 6")
    p(f"v_add_u32 v{T+4}, s7, v{T+4}")
    for jj in range(3):
        p(f"v_add_u32 v{T+5}, {2*jj}, v{T+4}")
        p(f"v_xor_b32 v{T+5}, v{T+5}, v{T+3}")
        p(f"v_lshl_add_u32 v{AD+jj}, v{T+5}, 4, v{T+2}")
        p(f"v_add_u32 v{AD+3+jj}, {2*CH}, v{AD+jj}")
    TR = AD + 6
    p(f"v_and_b32 v{T+2}, 15, v{L}")
    p(f"v_bfe_u32 v{T+3}, v{L}, 1, 3")
    p(f"v_xor_b32 v{T+3}, v{T+3}, v{T+1}")
    p(f"v_mul_u32_u24 v{T+2}, 384, v{T+2}")
    p(f"v_add_u32 v{T+2}, {TILE}, v{T+2}")
    p(f"v_lshl_add_u32 v{TR}, v{T+3}, 4, v{T+2}")
    p(f"v_xor_b32 v{T+3}, 4, v{T+3}")
    p(f"v_lshl_add_u32 v{TR+1}, v{T+3}, 4, v{T+2}")
    OW = AD + 8
    p(f"v_bfe_u32 v{T+3}, v{L}, 1, 3")
    p(f"v_bfe_u32 v{T+4}, v{L}, 4, 1")
    p(f"v_lshl_add_u32 v{T+2}, v{T+4}, 3, v{T+2}")
    p(f"v_lshrrev_b32 v{T+4}, 5, v{L}")
    p(f"v_add_u32 v{T+4}, s7, v{T+4}")
    for jj in range(3):
        p(f"v_add_u32 v{T+5}, {2*jj}, v{T+4}")
        p(f"v_xor_b32 v{T+5}, v{T+5}, v{T+3}")
        p(f"v_lshl_add_u32 v{OW+jj}, v{T+5}, 4, v{T+2}")
    HW = AD + 11
    p(f"s_lshl_b32 s8, s{S_W}, 3")
    p(f"v_add_u32 v{T+2}, s8, v2")
    p(f"v_bfe_u32 v{T+3}, v{T+2}, 1, 3")
    p(f"v_xor_b32 v{T+3}, v{T+3}, v3")
    p(f"v_mul_u32_u24 v{T+4}, 384, v{T+2}")
    p(f"v_lshl_add_u32 v{HW}, v{T+3}, 4, v{T+4}")
    p(f"v_add_u32 v{HW}, {TILE}, v{HW}")
    YR = 2
    p(f"v_mul_u32_u24 v{T+4}, {YSTR}, v{T+2}")
    p(f"v_lshl_add_u32 v{YR}, v3, 5, v{T+4}")
    stamp(p, 11)
    for i in range(12):
        if i == 11 and PROF:
            p(f"v_mov_b32 v254, v{XL+11}")
            stamp(p, 12)
        p(f"v_lshlrev_b32 v{XF+2*i}, 16, v{XL+i}")
        p(f"v_and_b32 v{XF+2*i+1}, 0xffff0000, v{XL+i}")
    layernorm(p, XF, D, T)
    for i in range(0, 24, 2):
        p(f"v_pk_mul_f32 {vr(D+i,2)}, {vr(D+i,2)}, {vr(T+2,2)}")
    for i in range(12):
        p(f"v_cvt_pk_bf16_f32 v{XL+i}, v{D+2*i}, v{D+2*i+1}")
    for a in range(3):
        p(f"ds_write_b128 v{HW}, {vr(XL+4*a,4)} offset:{a*128}")
    dump(p, "h", XL, 12)

    def read_operand():
        for tt in range(2):
            for ks in range(6):
                p(f"ds_read_b128 {vr(HO+24*tt+4*ks,4)}, v{TR+(ks&1)} offset:{tt*6144+(ks>>1)*128}")

    def wfrag_reads(chunk):
        slot = chunk % 4
        base = AD if slot < 2 else AD + 3
        imm0 = (slot & 1) * CH
        for ks in range(3):
            for jj in range(3):
                f = WF + 4 * (ks * 3 + jj)
                for h in range(2):
                    p(f"ds_read_b64_tr_b16 {vr(f+2*h,2)}, v{base+jj} offset:{imm0+ks*12288+h*1536}")

    def gemm_chunk(chunk, accbase, w_is_a):
        half = chunk & 1
        wfrag_reads(chunk)
        for ks in range(3):
            for jj in range(3):
                f = WF + 4 * (ks * 3 + jj)
                for tt in range(2):
                    a = accbase + 8 * jj + 4 * tt
                    c = "0" if (half == 0 and ks == 0) else vr(a, 4)
                    h = vr(HO + 24 * tt + 4 * (3 * half + ks), 4)
                    if w_is_a:
                        p(f"v_mfma_f32_16x16x32_bf16 {vr(a,4)}, {vr(f,4)}, {h}, {c}")
                    else:
                        p(f"v_mfma_f32_16x16x32_bf16 {vr(a,4)}, {h}, {vr(f,4)}, {c}")

    def pack(accbase, dst):
        for jj in range(3):
            for tt in range(2):
                a = accbase + 8 * jj + 4 * tt
                d = dst + 4 * jj + 2 * tt
                p(f"v_cvt_pk_bf16_f32 v{d}, v{a}, v{a+1}")
                p(f"v_cvt_pk_bf16_f32 v{d+1}, v{a+2}, v{a+3}")

    p("s_barrier ; B0")
    stamp(p, 1)
    read_operand()
    gemm_chunk(0, QA, True)
    p("s_barrier ; B1")
    stamp(p, 2)
    gemm_chunk(1, QA, True)
    p("s_barrier ; B2")
    stamp(p, 3)
    gemm_chunk(2, KA_, True)
    p("s_barrier ; B3")
    stamp(p, 4)
    gemm_chunk(3, KA_, True)
    QP0, KP0 = D, D + 12
    for tt in range(2):
        for jj in range(3):
            a = QA + 8 * jj + 4 * tt
            d = QP0 + 6 * tt + 2 * jj
            p(f"v_cvt_pk_bf16_f32 v{d}, v{a}, v{a+1}")
            p(f"v_cvt_pk_bf16_f32 v{d+1}, v{a+2}, v{a+3}")
            a = KA_ + 8 * jj + 4 * tt
            d = KP0 + 6 * tt + 2 * jj
            p(f"v_cvt_pk_bf16_f32 v{d}, v{a}, v{a+1}")
            p(f"v_cvt_pk_bf16_f32 v{d+1}, v{a+2}, v{a+3}")
    dump(p, "qk", D, 24)
    SA = QA
    for tt in range(2):
        p(f"v_mfma_f32_16x16x32_bf16 {vr(SA+4*tt,4)}, {vr(KP0+6*tt,4)}, {vr(QP0+6*tt,4)}, 0")
    for tt in range(2):
        p(f"v_mfma_f32_16x16x16_bf16 {vr(SA+4*tt,4)}, {vr(KP0+6*tt+4,2)}, {vr(QP0+6*tt+4,2)}, {vr(SA+4*tt,4)}")
    SPW = T + 8
    SPR = T + 9
    p(f"v_lshrrev_b32 v{T}, 4, v{L}")
    p(f"v_and_b32 v{T+1}, 7, v{L}")
    p(f"v_lshl_add_u32 v{T}, v{T}, 3, v{T+1}")
    p(f"v_lshlrev_b32 v{T}, 4, v{T}")
    p(f"v_add_u32 v{SPR}, {SP}, v{T}")
    p(f"s_lshl_b32 s8, s{S_W}, 10")
    p(f"v_add_u32 v{SPW}, s8, v{SPR}")
    p("s_mov_b32 s10, 0x00FF00FF")
    p("s_mov_b32 s11, 0xFF00FF00")
    p("s_mov_b64 exec, s[10:11]")
    for tt in range(2):
        p(f"ds_write_b128 v{SPW}, {vr(SA+4*tt,4)} offset:{tt*512}")
    p("s_mov_b64 exec, -1")
    p("s_barrier ; B4")
    stamp(p, 5)
    SR = QA + 8
    for tt in range(2):
        for w in range(4):
            p(f"ds_read_b128 {vr(SR+16*tt+4*w,4)}, v{SPR} offset:{w*1024+tt*512}")
    gemm_chunk(4, VA_, False)
    PP = D
    c1 = (192 ** -0.5) * math.log2(math.e)
    for tt in range(2):
        s = SR + 16 * tt
        for r in range(4):
            p(f"v_add_f32 v{s+r}, v{s+r}, v{s+4+r}")
            p(f"v_add_f32 v{s+8+r}, v{s+8+r}, v{s+12+r}")
            p(f"v_add_f32 v{s+r}, v{s+r}, v{s+8+r}")
            p(f"v_mul_f32 v{s+r}, {hexf(c1)}, v{s+r}")
        p(f"v_max3_f32 v{T}, v{s}, v{s+1}, v{s+2}")
        p(f"v_max_f32 v{T}, v{T}, v{s+3}")
        p(f"v_mov_b32 v{T+1}, v{T}")
        p(f"v_permlane16_swap_b32 v{T}, v{T+1}")
        p(f"v_max_f32 v{T}, v{T}, v{T+1}")
        for r in range(4):
            p(f"v_sub_f32 v{s+r}, v{s+r}, v{T}")
            p(f"v_exp_f32 v{s+r}, v{s+r}")
        p(f"v_add_f32 v{T}, v{s}, v{s+1}")
        p(f"v_add_f32 v{T+1}, v{s+2}, v{s+3}")
        p(f"v_add_f32 v{T}, v{T}, v{T+1}")
        p(f"v_mov_b32 v{T+1}, v{T}")
        p(f"v_permlane16_swap_b32 v{T}, v{T+1}")
        p(f"v_add_f32 v{T}, v{T}, v{T+1}")
        p(f"v_rcp_f32 v{T}, v{T}")
        for r in range(4):
            p(f"v_mul_f32 v{s+r}, v{s+r}, v{T}")
        p(f"v_cvt_pk_bf16_f32 v{PP+2*tt}, v{s}, v{s+1}")
        p(f"v_cvt_pk_bf16_f32 v{PP+2*tt+1}, v{s+2}, v{s+3}")
        p("s_mov_b64 vcc, s[10:11]")
        p(f"v_cndmask_b32 v{PP+2*tt}, 0, v{PP+2*tt}, vcc")
        p(f"v_cndmask_b32 v{PP+2*tt+1}, 0, v{PP+2*tt+1}, vcc")
    dump(p, "p", PP, 4)
    p("s_barrier ; B5")
    stamp(p, 6)
    gemm_chunk(5, VA_, False)
    VP = D + 4
    pack(VA_, VP)
    dump(p, "v", VP, 12)
    OA = QA
    for jj in range(3):
        for tt in range(2):
            p(f"v_mfma_f32_16x16x16_bf16 {vr(OA+8*jj+4*tt,4)}, {vr(VP+4*jj+2*tt,2)}, {vr(PP+2*tt,2)}, 0")
    pack(OA, VP)
    dump(p, "o", VP, 12)
    for jj in range(3):
        for tt in range(2):
            p(f"ds_write_b64 v{OW+jj}, {vr(VP+4*jj+2*tt,2)} offset:{tt*6144}")
    p("s_barrier ; B6")
    stamp(p, 7)
    read_operand()
    YA = VA_
    gemm_chunk(6, YA, True)
    p("s_barrier ; B7")
    stamp(p, 8)
    gemm_chunk(7, YA, True)
    dump(p, "y", YA, 24)
    p(f"v_and_b32 v{T}, 15, v{L}")
    p(f"v_mul_u32_u24 v{T}, {YSTR}, v{T}")
    p(f"v_lshrrev_b32 v{T+1}, 4, v{L}")
    p(f"v_lshl_add_u32 v{T}, v{T+1}, 4, v{T}")
    p(f"s_mul_i32 s8, s{S_W}, 192")
    p(f"v_add_u32 v{T}, s8, v{T}")
    for jj in range(3):
        for tt in range(2):
            p(f"ds_write_b128 v{T}, {vr(YA+8*jj+4*tt,4)} offset:{tt*16*YSTR+jj*64}")
    p("s_barrier ; B8")
    stamp(p, 9)
    for a in range(3):
        for h in range(2):
            p(f"ds_read_b128 {vr(D+8*a+4*h,4)}, v{YR} offset:{a*256+h*16}")
    for i in range(0, 24, 2):
        p(f"v_pk_add_f32 {vr(XF+i,2)}, {vr(XF+i,2)}, {vr(D+i,2)}")
    layernorm(p, XF, D, T)
    for i in range(0, 24, 2):
        p(f"v_pk_mul_f32 {vr(D+i,2)}, {vr(D+i,2)}, {vr(T+2,2)}")
    for i in range(12):
        p(f"v_cvt_pk_bf16_f32 v{XL+i}, v{D+2*i}, v{D+2*i+1}")
    p("s_bfe_u32 s8, s5, 0x10001")
    p("s_lshl_b32 s8, s8, 2")
    p("s_bfe_u32 s9, s5, 0x10003")
    p("s_lshl_b32 s9, s9, 1")
    p("s_or_b32 s8, s8, s9")
    p("s_bfe_u32 s9, s5, 0x10002")
    p("s_or_b32 s8, s8, s9")
    p(f"v_lshrrev_b32 v{T+6}, 3, v{L}")
    p(f"v_mul_u32_u24 v{T+7}, 393216, v{T+6}")
    p(f"v_xor_b32 v{T+8}, s8, v3")
    p(f"v_lshl_add_u32 v{T+7}, v{T+8}, 4, v{T+7}")
    for a in range(3):
        p(f"buffer_store_dwordx4 {vr(XL+4*a,4)}, v{T+7}, {sr(SRD_WS,4)}, s6 offen offset:{a*128}")
    p(f"v_mul_f32 v{T+1}, v{T+5}, v{T+2}")
    p(f"v_lshlrev_b32 v{T+7}, 13, v{T+6}")
    p("s_lshl_b32 s9, s5, 3")
    p(f"s_add_u32 s9, s9, {WS_MS}")
    p("s_mov_b32 s10, 0x01010101")
    p("s_mov_b32 s11, 0x01010101")
    p("s_mov_b64 exec, s[10:11]")
    p(f"buffer_store_dwordx2 {vr(T,2)}, v{T+7}, {sr(SRD_WS,4)}, s9 offen")
    stamps_out(p, 1, SRD_WS, S_W, L)
    ht_end(p, 1, L, 1)
    p("s_endpgm")


    if with_fold:
        p.label("k1_fold")
        make_srd(p, SRD_WQS, 22, 192 * 576 * 2)
        make_srd(p, SRD_WOS, 24, 192 * 192 * 2)
        fold.fold_setup_scalars(p, 15, 56)
        p("s_cmp_ge_u32 s15, 72")
        p("s_cbranch_scc1 k1_fold1")
        for kind in range(2):
            if kind:
                p.label("k1_fold1")
            nf = fold.fold_issue_loads(p, kind, 56, 64, L, SRD_WQS, SRD_WOS)
            for b in range(5, 8):
                p(f"s_waitcnt vmcnt({waits[b]+nf})")
                p(f"s_barrier ; B{b}")
            fold.fold_compute(p, kind, 56, 64, L, SRD_WS)
            p("s_endpgm")
    return name
```

```python
from common import *

SLOT = 12288
TILE = 147456
STATS = 159744
THR = 16.0

V_LANE = 1
KA = 2
VA = 6
V_L = 10
V_M = 11
V_THR = 12
V_LC = 13
T14, T15 = 14, 15
O = 16
QP = 112
NEGM = 160
S = 176
P = 192
T = 200
KF = 208
VF = 224
X = 248

S_W = 3
S_T = 4
S_I = 5
S_R = 6
SRD_WS = 32
SRD_OUT = 36


def emit_pi_token(p, dst, lam, tmp):
    p(f"v_add_u32 v{dst}, 4, v{lam}")
    p(f"v_cmp_gt_u32 vcc, 4, v{lam}")
    p(f"v_cndmask_b32 v{dst}, v{dst}, v{lam}, vcc")
    p(f"v_subrev_u32 v{tmp}, 8, v{lam}")
    p(f"v_cmp_lt_u32 vcc, 11, v{lam}")
    p(f"v_cndmask_b32 v{dst}, v{dst}, v{tmp}, vcc")


def emit_fsw(p, dst, row, tmp):
    p(f"v_and_b32 v{dst}, 2, v{row}")
    p(f"v_lshlrev_b32 v{dst}, 1, v{dst}")
    p(f"v_bfe_u32 v{tmp}, v{row}, 3, 1")
    p(f"v_lshl_or_b32 v{dst}, v{tmp}, 1, v{dst}")
    p(f"v_bfe_u32 v{tmp}, v{row}, 2, 1")
    p(f"v_or_b32 v{dst}, v{dst}, v{tmp}")


def tile_wr_addrs(p, dst3, s_w4, lane, t0, t1, t2, t3, base):
    p(f"v_and_b32 v{t0}, 15, v{lane}")
    emit_pi_token(p, t1, t0, t2)
    emit_fsw(p, t2, t1, t3)
    p(f"v_mul_u32_u24 v{t1}, 384, v{t1}")
    p(f"v_bfe_u32 v{t3}, v{lane}, 4, 1")
    p(f"v_lshl_add_u32 v{t1}, v{t3}, 3, v{t1}")
    p(f"v_add_u32 v{t1}, {base}, v{t1}")
    p(f"v_lshrrev_b32 v{t0}, 5, v{lane}")
    p(f"s_mul_i32 s{s_w4+1}, s{s_w4}, 6")
    p(f"v_add_u32 v{t0}, s{s_w4+1}, v{t0}")
    for jj in range(3):
        p(f"v_add_u32 v{t3}, {2*jj}, v{t0}")
        p(f"v_xor_b32 v{t3}, v{t3}, v{t2}")
        p(f"v_lshl_add_u32 v{dst3+jj}, v{t3}, 4, v{t1}")


def b16_addrs(p, dst2, lane, t0, t1, t2, t3, base):
    p(f"v_and_b32 v{t0}, 15, v{lane}")
    emit_pi_token(p, t1, t0, t2)
    emit_fsw(p, t2, t1, t3)
    p(f"v_mul_u32_u24 v{t1}, 384, v{t1}")
    p(f"v_add_u32 v{t1}, {base}, v{t1}")
    p(f"v_lshrrev_b32 v{t0}, 4, v{lane}")
    p(f"v_xor_b32 v{t0}, v{t0}, v{t2}")
    p(f"v_lshl_add_u32 v{dst2}, v{t0}, 4, v{t1}")
    p(f"v_xor_b32 v{t0}, 4, v{t0}")
    p(f"v_lshl_add_u32 v{dst2+1}, v{t0}, 4, v{t1}")


def gen_k2(p, dbg=False):
    name = "k2_kernel"
    p(".p2align 10")
    p(f".globl {name}\n.p2align 8\n.type {name},@function")
    p.label(name)
    p("s_cmp_ge_u32 s2, 256")
    p("s_cbranch_scc1 k2_exit")
    ht_start(p)
    stamp(p, 13, True)
    stamp(p, 0)
    p("s_load_dwordx16 s[16:31], s[0:1], 0")
    p(f"v_and_b32 v{V_LANE}, 63, v0")
    p("v_lshrrev_b32 v2, 6, v0")
    p(f"v_readfirstlane_b32 s{S_W}, v2")
    p(f"s_and_b32 s{S_T}, s2, 7")
    p(f"s_lshr_b32 s{S_I}, s2, 3")
    make_srd(p, SRD_WS, 30, WS_BYTES)
    make_srd(p, SRD_OUT, 26, 8 * 1024 * 192 * 2)
    p(f"s_cmp_ge_u32 s{S_W}, 4")
    p("s_cbranch_scc1 k2_loader")

    L = V_LANE
    def wq(n):
        return QP + 4 * n if n < 12 else VF + 4 * (n - 12)
    p(f"v_lshlrev_b32 v{T14}, 4, v{L}")
    p(f"s_mul_i32 s8, s{S_W}, 18432")
    p(f"s_add_u32 s8, s8, {WS_WQK}")
    for n in range(18):
        p(f"buffer_load_dwordx4 {vr(wq(n),4)}, v{T14}, {sr(SRD_WS,4)}, s8 offen offset:{(n%4)*1024}")
        if n % 4 == 3:
            p("s_add_u32 s8, s8, 4096")
    p(";@nopad")
    p("s_mov_b64 exec, 0")
    for c in range(4):
        p(f"s_cmp_eq_u32 s{S_W}, {c}")
        p(f"s_cbranch_scc1 @chain:k2:{c} ; noedge")
    p("s_branch k2_retc")
    p(";@padok")
    p.label("k2_loader")
    S_LW = 7
    p(f"s_sub_u32 s{S_LW}, s{S_W}, 4")
    VOFF = 2
    p(f"v_lshlrev_b32 v{VOFF}, 4, v{L}")
    MS = 4
    p(f"v_and_b32 v8, 15, v{L}")
    emit_pi_token(p, 9, 8, 10)
    p(f"s_lshl_b32 s8, s{S_T}, 10")
    p(f"s_lshl_b32 s9, s{S_I}, 5")
    p("s_add_u32 s8, s8, s9")
    p("s_mov_b32 s14, s8")
    p("s_lshl_b32 s8, s8, 3")
    p(f"s_add_u32 s8, s8, {WS_MS}")
    p("v_lshlrev_b32 v10, 3, v9")
    p(f"buffer_load_dwordx2 {vr(MS,2)}, v10, {sr(SRD_WS,4)}, s8 offen")
    p(f"buffer_load_dwordx2 {vr(MS+2,2)}, v10, {sr(SRD_WS,4)}, s8 offen offset:128")
    p(f"s_mul_i32 s10, s{S_T}, 393216")
    p(f"s_add_u32 s11, s{S_I}, s{S_LW}")
    p(f"s_mul_i32 s12, s{S_LW}, {SLOT}")

    def issue_block(r):
        p("s_and_b32 s11, s11, 31")
        p(f"s_mul_i32 s13, s11, {SLOT}")
        p("s_add_u32 s13, s13, s10")
        for k in range(3):
            p(f"s_add_u32 m0, s12, {(r%3)*49152 + k*4096}")
            for q in range(4):
                p(f"buffer_load_dwordx4 v{VOFF}, {sr(SRD_WS,4)}, s13 offen offset:{q*1024} lds")
            if k < 2:
                p("s_add_u32 s13, s13, 4096")
        p("s_add_u32 s11, s11, 4")
    for r in range(3):
        issue_block(r)
    p("s_branch k2_loader2")
    p.label("k2_retc")
    p("s_mov_b64 exec, -1")
    for i in range(96):
        p(f"v_mov_b32 v{O+i}, 0")
    p(f"v_and_b32 v{T}, 31, v{L}")
    emit_fsw(p, T + 1, T, T + 2)
    p(f"v_lshrrev_b32 v{T+2}, 5, v{L}")
    p(f"v_xor_b32 v{T+1}, v{T+1}, v{T+2}")
    p(f"v_mul_u32_u24 v{T}, 384, v{T}")
    for j in range(4):
        p(f"v_xor_b32 v{T+3}, {2*j}, v{T+1}")
        p(f"v_lshl_add_u32 v{KA+j}, v{T+3}, 4, v{T}")
    p(f"v_bfe_u32 v{T}, v{L}, 2, 2")
    p(f"v_lshl_add_u32 v{T}, v{T+2}, 2, v{T}")
    p(f"v_mul_u32_u24 v{T}, 384, v{T}")
    p(f"v_and_b32 v{T+3}, 1, v{L}")
    p(f"v_lshl_add_u32 v{T}, v{T+3}, 3, v{T}")
    p(f"v_bfe_u32 v{T+3}, v{L}, 4, 1")
    p(f"v_bfe_u32 v{T+4}, v{L}, 1, 1")
    p(f"v_lshl_add_u32 v{T+3}, v{T+3}, 1, v{T+4}")
    p(f"v_add_u32 v{T+3}, s{S_W}, v{T+3}")
    p(f"v_and_b32 v{T+3}, 3, v{T+3}")
    p(f"v_bfe_u32 v{T+4}, v{L}, 3, 1")
    p(f"v_lshl_or_b32 v{T+4}, v{T+4}, 2, v{T+2}")
    p(f"v_xor_b32 v{T+3}, v{T+3}, v{T+4}")
    for par in range(2):
        for half in range(2):
            p(f"v_xor_b32 v{T+4}, {4*par + 2*half}, v{T+3}")
            p(f"v_lshl_add_u32 v{VA+2*par+half}, v{T+4}, 4, v{T}")
            if half:
                p(f"v_add_u32 v{VA+2*par+half}, {8*384}, v{VA+2*par+half}")
    BA = X
    WA = X + 2
    b16_addrs(p, BA, L, T, T + 1, T + 2, T + 3, 0)
    tile_wr_addrs(p, WA, S_W_TMP(p), L, T, T + 1, T + 2, T + 3, TILE)
    p(f"v_mov_b32 v{V_L}, 0")
    p(f"v_mov_b32 v{V_M}, 0")
    p(f"v_mov_b32 v{V_THR}, 0xff800000")
    p(f"v_mov_b32 v{V_LC}, 0xff800000")
    stamp(p, 1)
    p("s_barrier ; BAR_A")
    stamp(p, 2)
    def acc(jj, tt):
        n = jj * 2 + tt
        return KF + 4 * n if n < 4 else T + 4 * (n - 4)
    for tt in range(2):
        for m in range(6):
            p(f"ds_read_b128 {vr(NEGM+4*m,4)}, v{BA+(m&1)} offset:{tt*6144+(m>>1)*128}")
        for m in range(6):
            for jj in range(3):
                c = "0" if m == 0 else vr(acc(jj, tt), 4)
                p(f"v_mfma_f32_16x16x32_bf16 {vr(acc(jj,tt),4)}, {vr(wq(jj*6+m),4)}, {vr(NEGM+4*m,4)}, {c}")
    for tt in range(2):
        for jj in range(3):
            a = acc(jj, tt)
            p(f"v_cvt_pk_bf16_f32 v{a}, v{a}, v{a+1}")
            p(f"v_cvt_pk_bf16_f32 v{a+1}, v{a+2}, v{a+3}")
            p(f"ds_write_b64 v{WA+jj}, {vr(a,2)} offset:{tt*6144}")
    stamp(p, 3)
    p("s_barrier ; BAR_B")
    stamp(p, 4)
    for j in range(4):
        p(f"v_add_u32 v{T+j}, {TILE}, v{KA+j}")
    for s in range(12):
        p(f"ds_read_b128 {vr(QP+4*s,4)}, v{T+(s&3)} offset:{(s>>2)*128}")
    for i in range(16):
        p(f"v_mov_b32 v{NEGM+i}, 0")
    p(f"s_mul_i32 s8, s{S_W}, {SLOT}")
    for j in range(4):
        p(f"v_add_u32 v{KA+j}, s8, v{KA+j}")
        p(f"v_add_u32 v{VA+j}, s8, v{VA+j}")
    p(f"s_mov_b32 s{S_R}, 0")
    p("s_mov_b32 s9, 0")
    stamp(p, 5)
    p.label("k2_loop")
    def kread(s):
        p(f"ds_read_b128 {vr(KF+4*(s&3),4)}, v{KA+(s&3)} offset:{(s>>2)*128}")
    for s in range(4):
        kread(s)
    for s in range(12):
        c = vr(NEGM, 16) if s == 0 else vr(S, 16)
        p(f"v_mfma_f32_32x32x16_bf16 {vr(S,16)}, {vr(KF+4*(s&3),4)}, {vr(QP+4*s,4)}, {c}")
        if s + 4 < 12:
            kread(s + 4)
    def vread(kap, ct, dst):
        for half in range(2):
            p(f"ds_read_b64_tr_b16 {vr(dst+2*half,2)}, v{VA+2*(ct&1)+half} offset:{kap*6144+(ct>>1)*128}")
    for ct in range(6):
        vread(0, ct, VF + 4 * ct)
    p(f"v_max3_f32 v{T}, v{S}, v{S+1}, v{S+2}")
    for i in range(3, 15, 2):
        p(f"v_max3_f32 v{T}, v{T}, v{S+i}, v{S+i+1}")
    p(f"v_max_f32 v{T}, v{T}, v{S+15}")
    p(f"v_cmp_gt_f32 vcc, v{T}, v{V_THR}")
    p("s_cbranch_vccnz k2_slow")
    p.label("k2_back")
    for i in range(16):
        p(f"v_exp_f32 v{S+i}, v{S+i}")
    for i in range(16):
        p(f"v_add_f32 v{V_L}, v{V_L}, v{S+i}")
    for i in range(8):
        p(f"v_cvt_pk_bf16_f32 v{P+i}, v{S+2*i}, v{S+2*i+1}")
    for ct in range(6):
        p(f"v_mfma_f32_32x32x16_bf16 {vr(O+16*ct,16)}, {vr(VF+4*ct,4)}, {vr(P,4)}, {vr(O+16*ct,16)}")
        vread(1, ct, VF + 4 * ct)
    for ct in range(6):
        p(f"v_mfma_f32_32x32x16_bf16 {vr(O+16*ct,16)}, {vr(VF+4*ct,4)}, {vr(P+4,4)}, {vr(O+16*ct,16)}")
    p(f"s_cmp_eq_u32 s{S_R}, 7")
    p("s_cbranch_scc1 k2_fin")
    p(f"s_add_u32 s{S_R}, s{S_R}, 1")
    p("s_add_u32 s9, s9, 1")
    p("s_cmp_eq_u32 s9, 3")
    p(f"s_mov_b32 s10, {-98304 & 0xffffffff}")
    p(f"s_cselect_b32 s10, s10, 49152")
    p("s_cselect_b32 s9, 0, s9")
    for j in range(4):
        p(f"v_add_u32 v{KA+j}, s10, v{KA+j}")
        p(f"v_add_u32 v{VA+j}, s10, v{VA+j}")
    p("s_barrier ; BAR_r")
    p("s_branch k2_loop")

    p.label("k2_slow")
    p(f"v_mov_b32 v{T+1}, v{T}")
    p(f"v_permlane32_swap_b32 v{T}, v{T+1}")
    p(f"v_max_f32 v{T}, v{T}, v{T+1}")
    p(f"v_max_f32 v{T}, v{T}, v{V_LC}")
    p(f"v_max_f32 v{T+1}, 0, v{T}")
    p(f"v_exp_f32 v{T+1}, -v{T+1}")
    p(f"v_add_f32 v{V_M}, v{V_M}, v{T}")
    for i in range(16):
        p(f"v_sub_f32 v{S+i}, v{S+i}, v{T}")
    for i in range(16):
        p(f"v_sub_f32 v{NEGM+i}, 0, v{V_M}")
    p(f"v_mul_f32 v{V_L}, v{V_L}, v{T+1}")
    for i in range(96):
        p(f"v_mul_f32 v{O+i}, v{O+i}, v{T+1}")
    p(f"v_mov_b32 v{V_THR}, {hexf(THR)}")
    p(f"v_mov_b32 v{V_LC}, 0")
    p("s_branch k2_back")

    p.label("k2_fin")
    stamp(p, 6)
    p(f"s_lshl_b32 s8, s{S_W}, 9")
    p(f"s_add_u32 s8, s8, {STATS}")
    p(f"v_lshlrev_b32 v{T}, 3, v{L}")
    p(f"v_add_u32 v{T}, s8, v{T}")
    p(f"ds_write_b64 v{T}, {vr(V_L,2)}")
    p(f"v_lshlrev_b32 v{T+1}, 4, v{L}")
    for G in range(1, 4):
        p(f"s_add_u32 s8, s{S_W}, {G}")
        p("s_and_b32 s8, s8, 3")
        p("s_mul_i32 s8, s8, 3")
        p(f"s_add_u32 s8, s8, {G-1}")
        p("s_mul_i32 s10, s8, 6144")
        p("s_cmp_ge_u32 s8, 8")
        p(f"s_cselect_b32 s11, {98304-8*6144}, 0")
        p("s_add_u32 s10, s10, s11")
        p(f"v_add_u32 v{T+2}, s10, v{T+1}")
        for ct in range(6):
            p(f"ds_write_b128 v{T+2}, {vr(O+16*ct+4*G,4)} offset:{ct*1024}")
    stamp(p, 7)
    p("s_barrier ; BAR_7")
    stamp(p, 8)
    p(f"v_and_b32 v{T}, 31, v{L}")
    p(f"v_lshlrev_b32 v{T}, 3, v{T}")
    p(f"v_add_u32 v{T}, {STATS}, v{T}")
    ST = KF
    for w in range(4):
        for hh in range(2):
            p(f"ds_read_b64 {vr(ST+4*w+2*hh,2)}, v{T} offset:{w*512+hh*256}")
    def rd(G, ct):
        n = (G - 1) * 6 + ct
        return QP + 4 * n if n < 12 else VF + 4 * (n - 12)
    for G in range(1, 4):
        p(f"s_mul_i32 s8, s{S_W}, 3")
        p(f"s_add_u32 s8, s8, {G-1}")
        p("s_mul_i32 s10, s8, 6144")
        p("s_cmp_ge_u32 s8, 8")
        p(f"s_cselect_b32 s11, {98304-8*6144}, 0")
        p("s_add_u32 s10, s10, s11")
        p(f"v_add_u32 v{T+2}, s10, v{T+1}")
        for ct in range(6):
            p(f"ds_read_b128 {vr(rd(G,ct),4)}, v{T+2} offset:{ct*1024}")
    p(f"v_max3_f32 v{T+3}, v{ST+1}, v{ST+5}, v{ST+9}")
    p(f"v_max_f32 v{T+3}, v{T+3}, v{ST+13}")
    for w in range(4):
        p(f"v_sub_f32 v{ST+4*w+1}, v{ST+4*w+1}, v{T+3}")
        p(f"v_exp_f32 v{ST+4*w+1}, v{ST+4*w+1}")
        p(f"v_add_f32 v{ST+4*w}, v{ST+4*w}, v{ST+4*w+2}")
    p(f"v_mul_f32 v{T+4}, v{ST}, v{ST+1}")
    for w in range(1, 4):
        p(f"v_fmac_f32 v{T+4}, v{ST+4*w}, v{ST+4*w+1}")
    p(f"v_rcp_f32 v{T+4}, v{T+4}")
    for w in range(4):
        p(f"v_mul_f32 v{ST+4*w+1}, v{ST+4*w+1}, v{T+4}")
    for G in range(4):
        p(f"s_sub_u32 s8, s{S_W}, {G}")
        p("s_and_b32 s8, s8, 3")
        p(f"v_mov_b32 v{T+4+G}, v{ST+1}")
        for w in range(1, 4):
            p(f"s_cmp_eq_u32 s8, {w}")
            p("s_cselect_b64 vcc, -1, 0")
            p(f"v_cndmask_b32 v{T+4+G}, v{T+4+G}, v{ST+4*w+1}, vcc")
    for ct in range(6):
        for r in range(4):
            p(f"v_mul_f32 v{O+16*ct+r}, v{O+16*ct+r}, v{T+4}")
    for G in range(1, 4):
        for ct in range(6):
            for r in range(4):
                p(f"v_fmac_f32 v{O+16*ct+r}, v{rd(G,ct)+r}, v{T+4+G}")
    p(f"v_and_b32 v{T}, 31, v{L}")
    emit_fsw(p, T + 1, T, T + 2)
    p(f"v_mul_u32_u24 v{T}, 384, v{T}")
    p(f"v_lshrrev_b32 v{T+2}, 5, v{L}")
    p(f"v_lshl_add_u32 v{T}, v{T+2}, 3, v{T}")
    p(f"v_add_u32 v{T}, {TILE}, v{T}")
    p(f"v_xor_b32 v{T+1}, s{S_W}, v{T+1}")
    p(f"v_lshl_add_u32 v{T+2}, v{T+1}, 4, v{T}")
    p(f"v_xor_b32 v{T+1}, 4, v{T+1}")
    p(f"v_lshl_add_u32 v{T+3}, v{T+1}, 4, v{T}")
    for ct in range(6):
        a = O + 16 * ct
        p(f"v_cvt_pk_bf16_f32 v{a}, v{a}, v{a+1}")
        p(f"v_cvt_pk_bf16_f32 v{a+1}, v{a+2}, v{a+3}")
        p(f"ds_write_b64 v{T+2+(ct&1)}, {vr(a,2)} offset:{(ct>>1)*128}")
    stamp(p, 9)
    p("s_barrier ; BAR_8")
    stamps_out(p, 2, SRD_WS, S_W, L)
    p("s_endpgm")

    p.label("k2_loader2")
    RA = 12
    tile_wr_addrs(p, RA, S_LW, L, 8, 9, 10, 11, 0, ) if False else None
    p(f"s_mov_b32 s40, s{S_LW}")
    tile_wr_addrs(p, RA, 40, L, 8, 9, 10, 11, 0)
    BA2 = 16
    b16_addrs(p, BA2, L, 8, 9, 10, 11, TILE)
    stamp(p, 1)
    p("s_waitcnt vmcnt(24)")
    stamp(p, 2)
    p("s_barrier ; BAR_A")
    RES = 20
    for jj in range(3):
        for tt in range(2):
            p(f"ds_read_b64 {vr(RES+4*jj+2*tt,2)}, v{RA+jj} offset:{tt*6144}")
    p("s_barrier ; BAR_B")
    WV = 64
    for r in range(8):
        if r < 5:
            p("s_waitcnt vmcnt(12)")
        elif r == 5:
            p("s_waitcnt vmcnt(30)")
        elif r == 6:
            p("s_waitcnt vmcnt(18)")
        stamp(p, 3 + r)
        p(f"s_barrier ; BAR_{r}")
        if r + 3 < 8:
            issue_block(r + 3)
        if r == 4:
            p(f"s_mul_i32 s8, s{S_LW}, 18432")
            p(f"s_add_u32 s8, s8, {WS_WVO}")
            for n in range(18):
                p(f"buffer_load_dwordx4 {vr(WV+4*n,4)}, v{VOFF}, {sr(SRD_WS,4)}, s8 offen offset:{(n%4)*1024}")
                if n % 4 == 3:
                    p("s_add_u32 s8, s8, 4096")
    XR = 32
    for jj in range(3):
        for tt in range(2):
            a = XR + 8 * jj + 4 * tt
            h = RES + 4 * jj + 2 * tt
            p(f"v_lshlrev_b32 v{a}, 16, v{h}")
            p(f"v_and_b32 v{a+1}, 0xffff0000, v{h}")
            p(f"v_lshlrev_b32 v{a+2}, 16, v{h+1}")
            p(f"v_and_b32 v{a+3}, 0xffff0000, v{h+1}")
            for r in range(4):
                p(f"v_fma_f32 v{a+r}, v{a+r}, v{MS+2*tt+1}, v{MS+2*tt}")
    p(f"v_and_b32 v8, 15, v{L}")
    emit_pi_token(p, 9, 8, 10)
    p(f"v_bfe_u32 v10, v{L}, 4, 1")
    p("v_lshl_add_u32 v9, v10, 4, v9")
    p("v_mul_u32_u24 v9, 384, v9")
    p(f"v_lshrrev_b32 v10, 5, v{L}")
    p("v_lshl_add_u32 v9, v10, 4, v9")
    p("s_mul_i32 s8, s14, 384")
    p(f"s_mul_i32 s9, s{S_LW}, 96")
    p("s_add_u32 s8, s8, s9")
    p("s_barrier ; BAR_8")
    stamp(p, 11)
    BF = 136
    for tt in range(2):
        for m in range(6):
            p(f"ds_read_b128 {vr(BF+24*tt+4*m,4)}, v{BA2+(m&1)} offset:{tt*6144+(m>>1)*128}")
    for tt in range(2):
        for m in range(6):
            for jj in range(3):
                a = XR + 8 * jj + 4 * tt
                p(f"v_mfma_f32_16x16x32_bf16 {vr(a,4)}, {vr(WV+4*(jj*6+m),4)}, {vr(BF+24*tt+4*m,4)}, {vr(a,4)}")
    for jj in range(3):
        a = XR + 8 * jj
        d = 192 + 4 * jj
        p(f"v_cvt_pk_bf16_f32 v{d}, v{a}, v{a+1}")
        p(f"v_cvt_pk_bf16_f32 v{d+1}, v{a+2}, v{a+3}")
        p(f"v_cvt_pk_bf16_f32 v{d+2}, v{a+4}, v{a+5}")
        p(f"v_cvt_pk_bf16_f32 v{d+3}, v{a+6}, v{a+7}")
        p(f"v_permlane16_swap_b32 v{d}, v{d+2}")
        p(f"v_permlane16_swap_b32 v{d+1}, v{d+3}")
        p(f"buffer_store_dwordx4 {vr(d,4)}, v9, {sr(SRD_OUT,4)}, s8 offen offset:{jj*32}")
    stamp(p, 12)
    stamps_out(p, 2, SRD_WS, S_W, L)
    ht_end(p, 2, L, 2)
    p.label("k2_exit")
    p("s_endpgm")
    return name


def S_W_TMP(p):
    p(f"s_mov_b32 s40, s{S_W}")
    return 40
```

```python
import re, subprocess, os

MC = "llvm-mc"
PROMO = {"v_add_f32", "v_sub_f32", "v_mul_f32", "v_max_f32", "v_min_f32", "v_exp_f32", "v_rcp_f32", "v_rsq_f32", "v_mov_b32",
         "v_and_b32", "v_or_b32", "v_xor_b32", "v_lshlrev_b32", "v_lshrrev_b32", "v_add_u32", "v_sub_u32", "v_subrev_u32",
         "v_fmac_f32", "v_mul_u32_u24", "v_cndmask_b32", "v_cmp_gt_f32", "v_cmp_lt_f32", "v_cmp_gt_u32", "v_cmp_lt_u32",
         "v_cmp_eq_u32", "v_subrev_f32", "v_cmp_ge_f32", "v_ashrrev_i32", "v_cvt_f32_u32", "v_log_f32"}


def is_ins(l):
    s = l.strip()
    if not s or s.startswith(";") or s.startswith("."):
        return False
    if re.match(r"^[\w.$]+:$", s):
        return False
    return True


def sizes_of(lines):
    src = []
    for l in lines:
        c = l.split(";")[0].strip()
        c = re.sub(r"@(chain|apad):\w+:\d+", "XLAB", c)
        src.append(c)
    labs = set()
    for c in src:
        if c.startswith("s_branch") or c.startswith("s_cbranch"):
            labs.add(c.split()[-1])
    txt = "\n".join(f"{x}:" for x in labs) + "\n" + "\n".join(src) + "\n"
    r = subprocess.run([MC, "-arch=amdgcn", "-mcpu=gfx950", "-show-encoding"], input=txt, capture_output=True, text=True)
    assert r.returncode == 0 and not r.stderr.strip(), r.stderr[:2000]
    out = []
    for l in r.stdout.split("\n"):
        m = re.search(r"; encoding: \[(.*?)\]", l)
        if m:
            out.append(len(m.group(1).split(",")))
    assert len(out) == len(lines), (len(out), len(lines))
    return out


def can_promote(l):
    c = l.split(";")[0].strip()
    op = c.split()[0]
    if op not in PROMO:
        return False
    if "dpp" in c or "quad_perm" in c or "row_" in c or "sdwa" in c or "sel" in c:
        return False
    return True


def layout(text, align=True, verbose=True):
    lines = text.split("\n")
    idx = [i for i, l in enumerate(lines) if is_ins(l)]
    sz = dict(zip(idx, sizes_of([lines[i] for i in idx])))
    out = []
    off = 0
    cfg = {}
    for l in lines:
        m = re.match(r"^\s*;@pads (.*)$", l)
        if m:
            d = dict(kv.split("=", 1) for kv in m.group(1).split())
            cfg[d["name"]] = d
    padlab = {}
    cur = None
    npad = 0
    nopad = False
    endpads = False
    kstart = 0
    next_b = None
    prev_ins = None
    pend = {}
    stats = []
    for i, l in enumerate(lines):
        s = l.strip()
        m = re.match(r"^\.p2align (\d+)", s)
        if m:
            a = 1 << int(m.group(1))
            off = (off + a - 1) // a * a
            out.append(l)
            prev_ins = None
            continue
        m = re.match(r"^(\w+)_kernel:$", s)
        if m:
            if cur:
                stats.append((cur, off_end - kstart, npad))
            cur = m.group(1)
            kstart = off
            npad = 0
            nopad = False
            endpads = False
            next_b = (off // 1024 + 1) * 1024
            out.append(l)
            prev_ins = None
            c = cfg.get(cur)
            if c and "apad" in c:
                for ap in c["apad"].split(","):
                    k_, lab = ap.split(":")
                    if int(k_) == 0:
                        assert off % 1024 == 0
                        out.append(f".L{cur}_apad0:")
                        out.append(f"  s_cbranch_execz {lab}")
                        off += 4
            continue
        if s == ";@nopad":
            nopad = True
            continue
        if s == ";@padok":
            nopad = False
            continue
        if s == ";@endpads":
            endpads = True
            continue
        if not is_ins(l):
            out.append(l)
            continue
        n = sz[i]
        c = cfg.get(cur)
        if c and off >= next_b and not nopad:
            kb = (next_b - kstart) // 1024 if kstart % 1024 == 0 else None
            if "apad" in c:
                for ap in c["apad"].split(","):
                    k_, lab = ap.split(":")
                    if int(k_) == kb:
                        out.append(f".L{cur}_apad{kb}:")
                        out.append(f"  s_cbranch_execz {lab}")
                        off += 4
            if not endpads:
                out.append(f".L{cur}_pad{npad}:")
                out.append(f"  s_cbranch_execz @next:{cur}:{npad}")
                npad += 1
                off += 4
            while next_b <= off:
                next_b += 1024
            prev_ins = None
        if align and n == 8 and off % 8 == 4:
            if prev_ins is not None and can_promote(out[prev_ins]) and prev_sz == 4:
                t = out[prev_ins]
                code, sep, note = t.partition(";")
                op = code.split()[0]
                out[prev_ins] = code.replace(op, op + "_e64", 1) + sep + note
                off += 4
            elif "noalign" not in l:
                run = 0
                for j in range(i, min(i + 12, len(lines))):
                    if j in sz:
                        if sz[j] == 8 and lines[j].strip().startswith("v_") and not lines[j].strip().startswith("v_mfma"):
                            run += 1
                        elif sz[j] != 8:
                            break
                if run >= 5:
                    out.append("  s_nop 0 ; align")
                    off += 4
        out.append(l)
        prev_ins = len(out) - 1
        prev_sz = n
        off += n
        off_end = off
        if cur:
            pend[cur] = npad
    if cur:
        stats.append((cur, off_end - kstart, npad))
    res = []
    for l in out:
        def nxt(m):
            k, i = m.group(1), int(m.group(2))
            c = cfg[k]
            nch = int(c["chains"])
            rets = c["ret"].split(",")
            if i + nch < pend[k]:
                return f".L{k}_pad{i+nch}"
            return rets[(i % nch) % len(rets)] if len(rets) < nch else rets[i % nch]
        def chain(m):
            k, ch = m.group(1), int(m.group(2))
            c = cfg[k]
            nch = int(c["chains"])
            rets = c["ret"].split(",")
            if ch < pend[k]:
                return f".L{k}_pad{ch}"
            return rets[ch % len(rets)] if len(rets) < nch else rets[ch]
        l = re.sub(r"@next:(\w+):(\d+)", nxt, l)
        l = re.sub(r"@chain:(\w+):(\d+)", chain, l)
        l = re.sub(r"@apad:(\w+):(\d+)", lambda m: f".L{m.group(1)}_apad{m.group(2)}", l)
        res.append(l)
    if verbose:
        for k, n, np_ in stats:
            print(f"layout: {k}: {n} bytes, {np_} pads")
    return "\n".join(res)
```

```python
import sys, os
sys.path.insert(0, os.path.dirname(os.path.abspath(__file__)))
from common import *
import fold
import layout

HEADER = open("standalone__video_timesformer__vision.s.ref").read().split("; Override launch")[0]


def build(kernels):
    launches, bodies, descs = [], [], []
    for gen, grid, block, lds, vgpr in kernels:
        p = Prog()
        name = gen(p)
        bodies.append(p.finalize())
        launches.append(f"; @launch kernel={name} grid=({grid},1,1) block=({block},1,1) lds={lds}")
        descs.append(KDESC.format(name=name, vgpr=vgpr, accum=vgpr))
    s = HEADER + "\n".join(launches) + "\n"
    s += '.amdgcn_target "amdgcn-amd-amdhsa--gfx950"\n.text\n'
    body = ".p2align 12\n" + "\n".join(bodies)
    body = layout.layout(body, align=(os.environ.get("NOALIGN", "") == ""))
    s += body
    s += "\n".join(descs)
    return s


def gen_noop(i):
    def g(p):
        name = f"noop{i}_kernel"
        p(f".globl {name}\n.p2align 8\n.type {name},@function")
        p.label(name)
        p("s_endpgm")
        return name
    return g


def gen_report(nprev):
    def g(p):
        name = "rep_kernel"
        p(f".globl {name}\n.p2align 8\n.type {name},@function")
        p.label(name)
        p("s_cmp_ge_u32 s2, 1")
        p("s_cbranch_scc1 rep_exit")
        p("s_load_dwordx16 s[16:31], s[0:1], 0")
        p(f"s_sub_u32 s92, s28, {512*nprev}")
        p("s_subb_u32 s93, s29, 0")
        p("s_mov_b32 s94, 256")
        p("s_mov_b32 s95, 0x00020000")
        make_srd(p, 32, 28, 256)
        p("v_lshlrev_b32 v1, 2, v0")
        p("buffer_load_dword v2, v1, s[92:95], 0 offen")
        p("buffer_store_dword v2, v1, s[32:35], 0 offen")
        p.label("rep_exit")
        p("s_endpgm")
        return name
    return g


def main():
    which = sys.argv[1] if len(sys.argv) > 1 else "all"
    out = sys.argv[2] if len(sys.argv) > 2 else "standalone__video_timesformer__vision.s"
    ks = []
    nn = 0
    for ch in which:
        if ch == "0":
            ks.append((fold.gen_k0, 36, 256, 0, 256))
        elif ch == "1":
            import k1
            ks.append((k1.gen_k1, 256, 512, 163840, 256))
        elif ch == "2":
            import k2
            ks.append((k2.gen_k2, 256, 512, 163840, 256))
        elif ch == "a":
            import k1b
            ks.append((k1b.gen_k1, 256, 512, 163840, 256))
        elif ch == "b":
            import k2b
            ks.append((k2b.gen_k2, 256, 512, 163840, 256))
        elif ch == "r":
            ks.append((gen_report(len(ks)), 1, 64, 0, 8))
        elif ch == "n":
            ks.append((gen_noop(nn), 256, 512, 0, 8))
            nn += 1
    open(out, "w").write(build(ks))


main()
```
